```python
import torch

def _softmax(x, axis=-1):
    return torch.softmax(x, dim=axis)
def _gelu(x):
    return torch.nn.functional.gelu(x, approximate="tanh")
def _silu(x):
    return torch.nn.functional.silu(x)
def _sigmoid(x):
    return torch.sigmoid(x)
def _layernorm(x, axis=-1, eps=1e-5):
    m = x.mean(dim=axis, keepdim=True)
    v = x.var(dim=axis, keepdim=True, unbiased=False)
    return (x - m) / torch.sqrt(v + eps)
def _scatter_add(tgt, idx, src, axis=0):
    return tgt.clone().index_add_(axis, idx, src)
def _segment_sum(src, seg, n):
    out = torch.zeros((n,) + src.shape[1:], dtype=src.dtype)
    return out.index_add_(0, seg, src)
def _pad(x, pw):
    flat = tuple(v for pair in reversed(pw) for v in pair)
    return torch.nn.functional.pad(x, flat)

kernel_name = 'interleave_layers__ssm_conv_h3__glu_gated_reglu__prompt'

def setup_inputs():

    _w = (lambda a: (lambda t: t.to(torch.bfloat16) if t.is_floating_point() else t)(torch.as_tensor(a)))
    def _A_setup():
        B, S, D = 1, 2048, 640
        ks = 4
        return {
            "q": _w((lambda *s: torch.randn(*s, dtype=torch.bfloat16) * 0.05)(B, S, D)),
            "k": _w((lambda *s: torch.randn(*s, dtype=torch.bfloat16) * 0.2)(B, S, D)),
            "v": _w((lambda *s: torch.randn(*s, dtype=torch.bfloat16) * 0.2)(B, S, D)),
            "shift_k": _w((lambda *s: torch.randn(*s, dtype=torch.bfloat16) * 0.2)(D, ks) * 0.5),
            "ssm_k": _w((lambda *s: torch.randn(*s, dtype=torch.bfloat16) * 0.8)(D, S) * (1.0 / S ** 0.5)),
            "ssm_D": _w((lambda *s: torch.randn(*s, dtype=torch.bfloat16) * 0.2)(D)),
        }
    _A_in = _A_setup()

    def _B_setup():
        B, S, D, F = 1, 2048, 640, 1536
        return {
            "x": _w((lambda *s: torch.randn(*s, dtype=torch.bfloat16) * 0.05)(B, S, D)),
            "W_gate": _w((lambda *s: torch.randn(*s, dtype=torch.bfloat16) * 0.4)(D, F) * (2.0 / D) ** 0.5),
            "W_up": _w((lambda *s: torch.randn(*s, dtype=torch.bfloat16) * 0.4)(D, F) * (2.0 / D) ** 0.5),
            "W_down": _w((lambda *s: torch.randn(*s, dtype=torch.bfloat16) * 0.4)(F, D) * (1.0 / F) ** 0.5),
        }
    _B_in = _B_setup()

    return {
        "A_q": _A_in["q"],
        "A_k": _A_in["k"],
        "A_v": _A_in["v"],
        "A_shift_k": _A_in["shift_k"],
        "A_ssm_k": _A_in["ssm_k"],
        "A_ssm_D": _A_in["ssm_D"],
        "B_x": _B_in["x"],
        "B_W_gate": _B_in["W_gate"],
        "B_W_up": _B_in["W_up"],
        "B_W_down": _B_in["W_down"],
    }

def reference(A_q, A_k, A_v, A_shift_k, A_ssm_k, A_ssm_D, B_x, B_W_gate, B_W_up, B_W_down):
    def _A_ref(q, k, v, shift_k, ssm_k, ssm_D):
        B, S, D = q.shape
        ks = shift_k.shape[-1]
        k_pad = _pad(k, ((0, 0), (ks - 1, 0), (0, 0)))
        k_shift = torch.zeros_like(k)
        for t in range(ks):
            k_shift = k_shift + k_pad[:, t:t + S, :] * shift_k[:, ks - 1 - t][None, None, :]
        kv = k_shift * v
        L = 2 * S
        kv_pad = _pad(kv, ((0, 0), (0, S), (0, 0)))
        kf_pad = _pad(ssm_k, ((0, 0), (0, S)))
        kv_f = (lambda x, axes=(-2,-1): torch.fft.rfft2(x.float(), dim=axes))(kv_pad[:, None, :, :], axes=(1, 2))
        kf_f = (lambda x, axes=(-2,-1): torch.fft.rfft2(x.float(), dim=axes))(kf_pad[:, None, :], axes=(1, 2))
        kf_f = (lambda x, *d: x.permute(*d))(kf_f, 1, 2, 0)
        y_f = kv_f * kf_f[None, :, :, :]
        y = (lambda x, s, axes=(-2,-1): torch.fft.irfft2(x, s=s, dim=axes).to(torch.bfloat16))(y_f, (1, L), axes=(1, 2))[:, 0, :S, :]
        y = y + kv * ssm_D[None, None, :]
        return q * y

    def _B_ref(x, W_gate, W_up, W_down):
        gate = torch.einsum("bsd,df->bsf", x, W_gate)
        up = torch.einsum("bsd,df->bsf", x, W_up)
        gate = gate * (lambda x, dt: x.to(dt))(gate > 0, gate.dtype)
        h = gate * up
        return torch.einsum("bsf,fd->bsd", h, W_down)

    x = A_q
    x = x + _A_ref(_layernorm(x, axis=-1), A_k, A_v, A_shift_k, A_ssm_k, A_ssm_D)
    x = x + _B_ref(_layernorm(x, axis=-1), B_W_gate, B_W_up, B_W_down)
    x = x + _A_ref(_layernorm(x, axis=-1), A_k, A_v, A_shift_k, A_ssm_k, A_ssm_D)
    x = x + _B_ref(_layernorm(x, axis=-1), B_W_gate, B_W_up, B_W_down)
    return x
```

```python
import re

_REG = re.compile(r"^(-|abs\()?([vas])(?:\[(\d+):(\d+)\]|(\d+))\)?$")


def regs_of(op):
    op = op.strip()
    if op in ("vcc", "vcc_lo", "vcc_hi"):
        return {("vcc", 0)}
    if op in ("exec", "exec_lo", "exec_hi"):
        return {("exec", 0)}
    if op == "m0":
        return {("m0", 0)}
    m = _REG.match(op)
    if not m:
        return set()
    k = m.group(2)
    if m.group(3) is not None:
        return {(k, i) for i in range(int(m.group(3)), int(m.group(4)) + 1)}
    return {(k, int(m.group(5)))}


TRANS = ("v_exp_f32", "v_log_f32", "v_rcp_f32", "v_rsq_f32", "v_sqrt_f32", "v_sin_f32", "v_cos_f32")


class Ins:
    __slots__ = ("text", "mn", "rd", "wr", "cls", "srcc", "ab", "states", "wide_data", "dpp")

    def __init__(self, text):
        self.text = text
        t = text.split(";")[0].strip()
        parts = t.split(None, 1)
        self.mn = mn = parts[0]
        rest = parts[1] if len(parts) > 1 else ""
        rest = re.sub(r"\s(op_sel|op_sel_hi|neg_lo|neg_hi|quad_perm):\[[^\]]*\]", " MOD", rest)
        ops = [o.strip() for o in rest.split(",")] if rest else []
        mods = []
        if ops:
            last = ops[-1].split()
            if last:
                ops[-1] = last[0]
                mods = last[1:]
        self.rd, self.wr = set(), set()
        self.srcc, self.ab, self.wide_data = set(), set(), set()
        self.states = 1
        self.dpp = "_dpp" in mn or any(m.startswith(("row_", "wave_", "quad_perm")) for m in mods)
        R = [regs_of(o) for o in ops]
        U = lambda l: set().union(*l) if l else set()
        if mn.startswith("v_mfma"):
            self.cls = "mfma"
            self.wr = R[0]
            self.ab = R[1] | R[2]
            self.srcc = R[3]
            self.rd = self.ab | self.srcc
        elif mn.startswith("v_cmp"):
            self.cls = "valu"
            self.wr = R[0]
            self.rd = U(R[1:])
        elif mn.startswith("v_permlane") and "swap" in mn:
            self.cls = "valu"
            self.wr = R[0] | R[1]
            self.rd = R[0] | R[1]
        elif mn.startswith(("v_readfirstlane", "v_readlane")):
            self.cls = "valu"
            self.wr = R[0]
            self.rd = U(R[1:])
        elif mn.startswith(("v_add_co", "v_sub_co", "v_addc_co", "v_subb_co")):
            self.cls = "valu"
            self.wr = R[0] | R[1]
            self.rd = U(R[2:])
        elif mn.startswith("v_"):
            self.cls = "valu"
            self.wr = R[0]
            self.rd = U(R[1:])
            if mn.startswith(("v_fmac", "v_dot2c", "v_pk_fmac", "v_writelane")) or self.dpp or "_sdwa" in mn:
                self.rd |= R[0]
        elif mn.startswith(("buffer_load", "global_load")):
            self.cls = "vmem"
            if "lds" in mods or "_lds_" in mn:
                self.rd = U(R) | {("m0", 0)}
            else:
                self.wr = R[0]
                self.rd = U(R[1:])
        elif mn.startswith(("buffer_store", "global_store", "buffer_atomic", "global_atomic")):
            self.cls = "vmem"
            self.rd = U(R)
            if mn.endswith(("x3", "x4")):
                self.wide_data = R[0] if mn.startswith("buffer") else R[1]
        elif mn.startswith(("buffer_wbl2", "buffer_inv")):
            self.cls = "vmem"
        elif mn.startswith("ds_read") or mn.startswith(("ds_bpermute", "ds_swizzle")):
            self.cls = "ds"
            self.wr = R[0]
            self.rd = U(R[1:])
        elif mn.startswith("ds_"):
            self.cls = "ds"
            self.rd = U(R)
        elif mn == "s_nop":
            self.cls = "nop"
            self.states = int(ops[0], 0) + 1
        elif mn.startswith(("s_load", "s_memtime", "s_memrealtime", "s_buffer_load")):
            self.cls = "smem"
            self.wr = R[0]
            self.rd = U(R[1:])
        elif mn.startswith(("s_cmp", "s_bitcmp", "s_cbranch", "s_branch", "s_waitcnt", "s_barrier", "s_sleep",
                            "s_setprio", "s_endpgm")):
            self.cls = "salu"
            self.rd = U(R)
            if mn in ("s_cbranch_vccnz", "s_cbranch_vccz"):
                self.rd |= {("vcc", 0)}
        elif mn.startswith("s_"):
            self.cls = "salu"
            self.wr = R[0] if R else set()
            self.rd = U(R[1:])
            if "saveexec" in mn:
                self.wr = self.wr | {("exec", 0)}
        else:
            raise ValueError("unknown instr: " + text)


def need_states(p, c):
    n = 0
    VA = lambda s: {r for r in s if r[0] in "va" and r[0] != "vcc"}
    SG = lambda s: {r for r in s if r[0] in ("s", "vcc")}
    if p.cls == "valu":
        pv, ps = VA(p.wr), SG(p.wr)
        if c.cls == "mfma" and pv & c.rd:
            n = max(n, 2)
        if c.cls == "valu":
            if c.dpp and pv & c.rd:
                n = max(n, 2)
            if c.mn.startswith("v_permlane") and pv & c.rd:
                n = max(n, 2)
            if c.mn.startswith(("v_readfirstlane", "v_readlane")) and pv & c.rd:
                n = max(n, 1)
            if ps & c.rd:
                n = max(n, 4 if c.mn.startswith(("v_readlane", "v_writelane")) else 2)
            if p.mn.startswith(TRANS) and pv & c.rd:
                n = max(n, 1)
            if "_sdwa" in p.mn and pv & (c.rd | c.wr):
                n = max(n, 1)
        if c.cls == "vmem" and ps & c.rd:
            n = max(n, 5)
        if c.cls in ("salu", "smem") and ps & c.rd:
            n = max(n, 4)
    if p.cls == "mfma":
        passes = 8 if "32x32" in p.mn else 4
        big = {4: 8, 8: 12}[passes]
        if c.cls == "mfma":
            if p.wr & c.ab:
                n = max(n, big)
            if p.wr & c.srcc and not (p.wr == c.srcc):
                n = max(n, big - 2)
            if p.wr & c.wr and not (p.wr & c.srcc):
                n = max(n, big)
        elif c.cls in ("valu", "vmem", "ds"):
            if p.wr & (c.rd | c.wr):
                n = max(n, big)
            if c.cls == "valu" and p.srcc & c.wr:
                n = max(n, passes - 1)
    if p.cls == "vmem" and p.wide_data:
        if c.cls == "valu" and p.wide_data & c.wr:
            n = max(n, 2)
        elif p.wide_data & c.wr:
            n = max(n, 1)
    if p.cls == "salu" and ("m0", 0) in p.wr and c.cls == "vmem" and ("m0", 0) in c.rd:
        n = max(n, 1)
    return n


class Asm:
    def __init__(self):
        self.items = []
        self.vm = 0
        self.lg = 0
        self.nlab = 0
        self.auto_nops = 0

    def __call__(self, text, optional=False):
        h = None
        for line in text.split("\n"):
            line = line.strip()
            if not line or line.startswith(";"):
                continue
            if line.endswith(":"):
                self.items.append(("label", line[:-1]))
                continue
            i = Ins(line)
            self.items.append(i)
            if i.cls == "vmem" and not optional:
                self.vm += 1
                h = ("vm", self.vm)
            elif i.cls == "ds" and not optional:
                self.lg += 1
                h = ("lg", self.lg)
        return h

    def label(self, stem):
        self.nlab += 1
        return f"L{stem}_{self.nlab}"

    def comment(self, t):
        self.items.append(("raw", "; " + t))

    def raw(self, t):
        self.items.append(("raw", t))

    def wait(self, *hs):
        v = [self.vm - h[1] for h in hs if h and h[0] == "vm"]
        l = [self.lg - h[1] for h in hs if h and h[0] == "lg"]
        t = []
        if v and min(v) <= 62:
            t.append(f"vmcnt({min(v)})")
        elif v:
            t.append("vmcnt(62)")
        if l:
            t.append(f"lgkmcnt({min(min(l), 14)})")
        if t:
            self("s_waitcnt " + " ".join(t))

    def vm_handle(self):
        return ("vm", self.vm)

    def lg_handle(self):
        return ("lg", self.lg)

    def text(self):
        out = []
        win = []
        for it in self.items:
            if isinstance(it, tuple):
                out.append(it[1] + (":" if it[0] == "label" else ""))
                continue
            need = 0
            dist = 0
            for p in reversed(win):
                n = need_states(p, it)
                if n - dist > need:
                    need = n - dist
                dist += p.states
                if dist >= 12:
                    break
            if need > 0:
                nop = Ins(f"s_nop {need - 1}")
                out.append("  " + nop.text)
                win.append(nop)
                self.auto_nops += 1
            out.append("  " + it.text)
            win.append(it)
            if len(win) > 16:
                win = win[-16:]
        return "\n".join(out) + "\n"


def v(a, n=1):
    return f"v{a}" if n == 1 else f"v[{a}:{a + n - 1}]"


def a_(a, n=1):
    return f"a{a}" if n == 1 else f"a[{a}:{a + n - 1}]"


def s(a, n=1):
    return f"s{a}" if n == 1 else f"s[{a}:{a + n - 1}]"
```

```python
import sys
from dsl import Asm, v, a_, s

NAME = "interleave_layers__ssm_conv_h3__glu_gated_reglu__prompt_kernel"

WS_E = 0
WS_XP = 4096
WS_FL = 32768
WS_XF = 65536
WS_PROF = 131072
AB = 1 << 20
XB = 4 << 20
YB = 7 << 20
HB = 10 << 20
KVS = 4224
HUGE = 0x80000000
PH_P0, PH_Y, PH_R1, PH_G1A, PH_G2A, PH_R2, PH_G1B = range(7)

L_RING = 0
L_WD = 81920
L_RED = 0
L_ST = 61760
L_U = 62464
L_Y = 69632
L_T = 81920
W1C = 12320
W1U = 6176

WS, Q, K_, V_, H_, W1, WD, OUT, SH = 4, 8, 12, 16, 20, 24, 28, 32, 36
sG, sM, sW, sTAG, sXCC, sD = 40, 41, 42, 43, 44, 45
sT0 = 46
sFLO = 64
sFLG = 65
sI2 = 66
sPROF = 70

vL = 0
vTAG = 1
vL16 = 2


def W1reg(c, jj, half=None):
    base, kind = (112 + 12 * c + 4 * jj, v) if c < 12 else (12 * (c - 12) + 4 * jj, a_)
    return kind(base, 4) if half is None else kind(base + 2 * half, 2)


def WDreg(c, jj, half=None):
    base = 96 + 20 * c + 4 * jj
    return a_(base, 4) if half is None else a_(base + 2 * half, 2)


class Gen:
    def __init__(self, prof=False, stop=None, opts=None):
        self.a = Asm()
        self.prof = prof
        self.stop = stop
        self.nst = 0
        self.o = dict(opts or {})

    def stamp(self, name):
        if not self.prof or (self.prof is not True and name not in self.prof):
            return
        i = self.nst
        self.nst += 1
        self.names.append(name) if self.mode_names else None
        assert i < 16
        self.a(f"s_memrealtime s[{sPROF + 2 * i}:{sPROF + 2 * i + 1}]")

    def guard(self):
        if self.o.get("safe"):
            self.a("s_sub_u32 s68, s68, 1\ns_cbranch_scc1 L_bail")

    def srd(self, d, p, nbytes):
        self.a(f"s_mov_b32 s{d}, s{p}\ns_mov_b32 s{d + 1}, s{p + 1}\ns_mov_b32 s{d + 2}, {nbytes}\ns_mov_b32 s{d + 3}, 0x20000")

    def div_const(self, q, r, x, n, t):
        a = self.a
        a(f"v_cvt_f32_u32 v{t}, v{x}")
        a(f"v_add_f32 v{t}, 0.5, v{t}")
        a(f"v_mul_f32 v{t}, {1.0 / n!r}, v{t}")
        a(f"v_cvt_u32_f32 v{q}, v{t}")
        a(f"v_mul_u32_u24 v{t}, {n}, v{q}")
        a(f"v_sub_u32 v{r}, v{x}, v{t}")

    def flag(self, ph):
        a = self.a
        a(f"s_add_u32 s{sT0}, s{sFLO}, {ph * 4096}")
        a("s_mov_b64 exec, 1")
        a(f"buffer_store_dword v{vTAG}, off, s[{WS}:{WS + 3}], s{sT0} {self.sc}")
        a("s_mov_b64 exec, -1")

    def poll(self, ph, vaddr, vt):
        a = self.a
        L = a.label("poll")
        a(f"s_add_u32 s{sT0}, s{sFLG}, {ph * 4096}")
        a(f"{L}:")
        self.guard()
        a(f"buffer_load_dwordx4 {v(vt, 4)}, v{vaddr}, s[{WS}:{WS + 3}], s{sT0} offen sc1")
        a("s_waitcnt vmcnt(0)")
        a(f"v_bitop3_b32 v{vt}, v{vt}, v{vt + 1}, v{vTAG} bitop3:0x7e")
        a(f"v_bitop3_b32 v{vt + 2}, v{vt + 2}, v{vt + 3}, v{vTAG} bitop3:0x7e")
        a(f"v_or_b32 v{vt}, v{vt}, v{vt + 2}")
        a(f"v_cmp_ne_u32 vcc, 0, v{vt}")
        a(f"s_cbranch_vccnz {L}")
        if self.slow:
            a("buffer_inv sc1\ns_waitcnt vmcnt(0)")

    def members(self, vd, base_s, cnt, clamp=None):
        a = self.a
        a(f"v_and_b32 v{vd}, {cnt - 1}, v{vL}")
        if clamp is not None:
            a(f"v_min_u32 v{vd}, {clamp}, v{vd}")
        if base_s is not None:
            a(f"v_add_u32 v{vd}, s{base_s}, v{vd}")
        a(f"v_lshlrev_b32 v{vd}, 4, v{vd}")

    def prologue(self):
        a = self.a
        a("s_cmp_ge_u32 s2, 256\ns_cbranch_scc1 L_exit")
        self.stamp("start")
        a("s_load_dwordx2 s[62:63], s[0:1], 96")
        a("s_load_dwordx8 s[44:51], s[0:1], 0")
        a("s_load_dwordx4 s[52:55], s[0:1], 32")
        a("s_load_dwordx4 s[56:59], s[0:1], 56")
        a("s_load_dwordx4 s[64:67], s[0:1], 72")
        a("s_getreg_b32 s3, hwreg(HW_REG_XCC_ID, 0, 4)")
        a("v_lshrrev_b32 v3, 6, v0")
        a(f"v_and_b32 v{vL}, 63, v0")
        a(f"v_readfirstlane_b32 s{sW}, v3")
        a(f"s_and_b32 s{sG}, s2, 7\ns_lshr_b32 s{sM}, s2, 3")
        a(f"v_lshlrev_b32 v{vL16}, 4, v{vL}")
        a(f"v_cmp_le_u32 vcc, 20, v{vL}")
        a("v_cndmask_b32 v3, 0, 1, vcc")
        a(f"v_mul_u32_u24 v4, 20, v3")
        a(f"v_sub_u32 v4, v{vL}, v4")
        a(f"s_lshl_b32 s60, s{sM}, 3\ns_lshl_b32 s61, s{sW}, 1\ns_add_u32 s60, s60, s61")
        a("v_add_u32 v3, s60, v3")
        a(f"s_mul_i32 s61, s{sG}, 160")
        a("v_mul_u32_u24 v5, 10240, v3")
        a("v_lshl_add_u32 v5, v4, 3, v5")
        a("v_add_u32 v5, s61, v5")
        a("v_mov_b32 v7, 0x80000000")
        a(f"v_cmp_gt_u32 vcc, 40, v{vL}")
        a("v_cndmask_b32 v5, v7, v5, vcc")
        a("v_subrev_u32 v6, 3840, v5")
        a(f"s_mul_i32 s61, s{sG}, 640")
        a("v_lshlrev_b32 v8, 5, v4")
        a("v_add_u32 v8, s61, v8")
        a(f"v_mul_u32_u24 v9, {4 * KVS}, v4")
        a("v_lshl_add_u32 v9, v3, 4, v9")
        a("v_cndmask_b32 v9, v7, v9, vcc")
        a("s_waitcnt lgkmcnt(0)")
        self.srd(K_, 46, 2621440)
        self.srd(V_, 48, 2621440)
        self.srd(SH, 50, 5120)
        a(f"s_load_dword s{sTAG}, s[62:63], {WS_E}")
        a("s_movk_i32 s60, 5120")
        for i in range(3):
            a(f"buffer_load_dwordx2 {v(112 + 2 * i, 2)}, v6, s[{K_}:{K_ + 3}], 0 offen offset:{1280 * i}")
        a(f"buffer_load_dwordx4 {v(152, 4)}, v8, s[{SH}:{SH + 3}], 0 offen")
        a(f"buffer_load_dwordx4 {v(156, 4)}, v8, s[{SH}:{SH + 3}], 0 offen offset:16")
        self.h_kv = []
        for r in range(8):
            so = "0" if r < 4 else "s60"
            a(f"buffer_load_dwordx2 {v(118 + 2 * r, 2)}, v5, s[{K_}:{K_ + 3}], {so} offen offset:{1280 * (r % 4)}")
            self.h_kv.append(a(f"buffer_load_dwordx2 {v(134 + 2 * r, 2)}, v5, s[{V_}:{V_ + 3}], {so} offen offset:{1280 * (r % 4)}"))
        self.srd(WS, 62, 0x10000000)
        self.srd(Q, 44, 2621440)
        a(f"s_mov_b32 s{sXCC}, s3")
        a(f"s_mul_i32 s60, s{sG}, 80\ns_lshl_b32 s61, s{sM}, 2\ns_add_u32 s60, s60, s61\ns_add_u32 s60, s60, s{sW}")
        a("s_min_u32 s60, s60, 639")
        a("s_lshl_b32 s61, s60, 12")
        a(f"s_add_u32 s{H_}, s52, s61\ns_addc_u32 s{H_ + 1}, s53, 0\ns_mov_b32 s{H_ + 3}, 0x20000")
        a(f"s_cmp_lt_u32 s{sM}, 20\ns_cselect_b32 s{H_ + 2}, 4096, 0")
        a("s_lshr_b32 s61, s60, 1\ns_lshl_b32 s61, s61, 2")
        a(f"s_load_dword s{sD}, s[54:55], s61")
        a(f"s_cmp_lt_u32 s{sW}, 2")
        a(f"s_cselect_b32 s{W1}, s56, s58\ns_cselect_b32 s{W1 + 1}, s57, s59")
        a(f"s_mov_b32 s{W1 + 2}, 1966080\ns_mov_b32 s{W1 + 3}, 0x20000")
        self.srd(WD, 64, 1966080)
        self.srd(OUT, 66, 2621440)
        a(f"s_cmp_lt_u32 s{sW}, 2\ns_cselect_b32 s{sI2}, 0, 0x80000000")
        a(f"s_lshl_b32 s{sFLG}, s{sG}, 9\ns_add_u32 s{sFLG}, s{sFLG}, {WS_FL}")
        a(f"s_lshl_b32 s60, s{sM}, 4\ns_lshl_b32 s61, s{sW}, 2\ns_add_u32 s60, s60, s61\ns_add_u32 s{sFLO}, s{sFLG}, s60")
        for j in range(4):
            b = 160 + 10 * j
            a(f"buffer_load_dwordx4 {v(b, 4)}, v{vL16}, s[{H_}:{H_ + 3}], 0 offen offset:{1024 * j}")
            a(f"buffer_load_dwordx4 {v(b + 4, 4)}, v{vL16}, s[{H_}:{H_ + 3}], 0 offen offset:{1024 * j + 4}")
            a(f"buffer_load_dword v{b + 8}, v{vL16}, s[{H_}:{H_ + 3}], 0 offen offset:{1024 * j + 20}")
        a("s_waitcnt lgkmcnt(0)")
        a(f"s_mul_i32 s{sTAG}, s{sTAG}, 1664525\ns_add_u32 s{sTAG}, s{sTAG}, 1013904223")
        a(f"v_mov_b32 v{vTAG}, s{sTAG}")
        a(f"s_add_u32 s60, s{sTAG}, s{sXCC}")
        a(f"s_lshl_b32 s46, s{sG}, 11\ns_add_u32 s46, s46, {WS_XP}")
        a("v_mov_b32 v12, s60\nv_mov_b32 v13, s60\nv_mov_b32 v14, s60\nv_mov_b32 v15, s60")
        a(f"s_lshl_b32 s61, s{sM}, 6\ns_add_u32 s61, s61, s46")
        a(f"s_cmp_eq_u32 s{sW}, 0\ns_cselect_b32 s61, s61, 0x80000000")
        a("s_mov_b64 exec, 15")
        a(f"buffer_store_dwordx4 v[12:15], v{vL16}, s[{WS}:{WS + 3}], s61 offen sc1")
        a("s_mov_b64 exec, -1")
        a(f"v_and_b32 v10, 31, v{vL}\nv_lshlrev_b32 v10, 6, v10")
        self.stamp("issued")
        a.wait(self.h_kv[0])
        for c in range(4):
            for t in range(4):
                src = 152 + 2 * c + t // 2
                if t % 2 == 0:
                    a(f"v_lshlrev_b32 v{16 + 4 * t + c}, 16, v{src}")
                else:
                    a(f"v_and_b32 v{16 + 4 * t + c}, 0xffff0000, v{src}")

        def unpack2(dst, src):
            a(f"v_lshlrev_b32 v{dst}, 16, v{src}\nv_and_b32 v{dst + 1}, 0xffff0000, v{src}")
            a(f"v_lshlrev_b32 v{dst + 2}, 16, v{src + 1}\nv_and_b32 v{dst + 3}, 0xffff0000, v{src + 1}")
        for i in range(3):
            unpack2(32 + 4 * i, 112 + 2 * i)
        for r in range(8):
            a.wait(self.h_kv[r])
            if r == 5:
                a(f"buffer_load_dword v14, v10, s[{WS}:{WS + 3}], s46 offen sc1")
            unpack2(32 + 4 * (r + 3), 118 + 2 * r)
            unpack2(76, 134 + 2 * r)
            for p in range(2):
                u = 80 + 4 * r + 2 * p
                a(f"v_pk_mul_f32 {v(u, 2)}, {v(16 + 12 + 2 * p, 2)}, {v(32 + 4 * r + 2 * p, 2)}")
                for t in (2, 1, 0):
                    a(f"v_pk_fma_f32 {v(u, 2)}, {v(16 + 4 * t + 2 * p, 2)}, {v(32 + 4 * (r + 3 - t) + 2 * p, 2)}, {v(u, 2)}")
                a(f"v_pk_mul_f32 {v(u, 2)}, {v(u, 2)}, {v(76 + 2 * p, 2)}")
        for c in range(4):
            for j in range(4):
                a(f"v_cvt_pk_bf16_f32 v{16 + 4 * c + j}, v{80 + 4 * (7 - 2 * j) + c}, v{80 + 4 * (6 - 2 * j) + c}")
        a("L_xcc:")
        self.guard()
        a("s_waitcnt vmcnt(0)")
        a(f"v_subrev_u32 v14, s{sTAG}, v14")
        a("v_cmp_lt_u32 vcc, 15, v14")
        a("s_cbranch_vccz L_xok")
        a(f"buffer_load_dword v14, v10, s[{WS}:{WS + 3}], s46 offen sc1")
        a("s_branch L_xcc")
        a("L_xok:")
        a(f"v_cmp_ne_u32 vcc, s{sXCC}, v14")
        a("s_cbranch_vccnz L_slow")

    def p0_store(self):
        a = self.a
        a(f"s_mul_i32 s47, s{sG}, 786432\ns_add_u32 s47, s47, {HB}")
        for c in range(4):
            a(f"s_add_u32 s48, s47, {c * KVS}")
            a(f"buffer_store_dwordx4 {v(16 + 4 * c, 4)}, v9, s[{WS}:{WS + 3}], s48 offen {self.sc}")
        a("s_waitcnt vmcnt(0)")
        self.flag(PH_P0)
        self.stamp("p0done")

    def conv(self):
        a = self.a
        a(f"s_mul_i32 s48, s{sW}, 16640\ns_add_u32 s48, s48, {L_T}")
        a(f"v_add_u32 v3, s48, v{vL16}")
        a(f"v_and_b32 v4, 1, v{vL}\nv_lshlrev_b32 v4, 4, v4\nv_add_u32 v4, s48, v4")
        a("v_readfirstlane_b32 s49, v160\nv_readfirstlane_b32 s50, v161")
        for i in range(7):
            a(f"v_mov_b32 v{200 + i}, 0")
        a(f"v_and_b32 v8, 1, v{vL}\nv_sub_u32 v8, 0, v8")
        a("v_and_b32 v207, s49, v8\nv_and_b32 v208, s50, v8")
        for j in range(5):
            b = 160 + 10 * j
            ad, off = (3, 32 + 1024 * j) if j < 4 else (4, 0)
            for i in range(4):
                a(f"v_alignbit_b32 v{8 + i}, v{b + 4 + i}, v{b + i}, 16")
            for i in range(4):
                a(f"v_alignbit_b32 v{12 + i}, v{b + 5 + i}, v{b + 4 + i}, 16")
            a(f"ds_write_b128 v{ad}, {v(b, 4)} offset:{off}")
            a(f"ds_write_b128 v{ad}, v[8:11] offset:{off + 4160}")
            a(f"ds_write_b128 v{ad}, {v(b + 4, 4)} offset:{off + 8320}")
            a(f"ds_write_b128 v{ad}, v[12:15] offset:{off + 12480}")
        a(f"s_mul_i32 s49, s{sW}, 4608\ns_add_u32 s49, s49, {L_U}")
        a("v_mov_b32 v8, 0\nv_mov_b32 v9, 0\nv_mov_b32 v10, 0\nv_mov_b32 v11, 0")
        a(f"v_min_u32 v4, 29, v{vL}\nv_lshlrev_b32 v4, 4, v4\nv_add_u32 v4, s49, v4")
        a("ds_write_b128 v4, v[8:11]")
        a(f"v_and_b32 v7, 15, v{vL}\nv_lshrrev_b32 v8, 4, v{vL}")
        a("v_add_u32 v9, 1, v7\nv_and_b32 v9, 3, v9")
        a("v_lshlrev_b32 v10, 3, v8\nv_sub_u32 v10, v7, v10")
        a("v_sub_u32 v11, v10, v9\nv_add_u32 v11, 25, v11\nv_lshlrev_b32 v11, 1, v11")
        a("v_mul_u32_u24 v9, 4160, v9\nv_add3_u32 v5, v9, v11, s48")
        a("v_lshlrev_b32 v6, 5, v7\nv_lshl_add_u32 v6, v8, 4, v6\nv_add_u32 v6, s49, v6")
        a(f"s_and_b32 s50, s{sW}, 1\ns_lshl_b32 s50, s50, 4\ns_lshr_b32 s50, s{sD}, s50\ns_and_b32 s50, s50, 0xffff")
        a("v_sub_u32 v11, -9, v10")
        a("v_and_b32 v12, 1, v11\nv_lshlrev_b32 v12, 4, v12\nv_lshlrev_b32 v12, v12, s50")
        a("v_ashrrev_i32 v11, 1, v11")
        for j in range(4):
            a(f"v_cmp_eq_u32 vcc, {j}, v11\nv_cndmask_b32 v{64 + j}, 0, v12, vcc")
        a("v_lshrrev_b32 v9, 1, v7\nv_mul_u32_u24 v9, 40960, v9\nv_and_b32 v10, 1, v7\nv_lshlrev_b32 v10, 5, v10")
        a("v_lshlrev_b32 v8, 3, v8\nv_add3_u32 v4, v9, v10, v8")
        a(f"s_mul_i32 s51, s{sG}, 80\ns_lshl_b32 s52, s{sM}, 2\ns_add_u32 s52, s52, s{sW}\ns_add_u32 s51, s51, s52")
        a(f"s_lshl_b32 s51, s51, 6\ns_add_u32 s51, s51, {YB}")
        a(f"s_mul_i32 s52, s52, {KVS}\ns_add_u32 s52, s52, s47")
        self.members(7, None, 32)
        self.stamp("tbuilt")
        self.poll(PH_P0, 7, 8)
        self.stamp("p0seen")
        a("s_add_u32 s49, s49, 480")
        hU = []
        for i in range(4):
            a("s_mov_b32 m0, s49")
            hU.append(a(f"buffer_load_dwordx4 v{vL16}, s[{WS}:{WS + 3}], s52 offen sc1 lds"))
            a("s_add_u32 s49, s49, 1024\ns_add_u32 s52, s52, 1024")
        a("s_waitcnt lgkmcnt(0)")

        def tread(k):
            a(f"ds_read_b64 {a_(4 * k, 2)}, v5 offset:{64 * k}")
            return a(f"ds_read_b64 {a_(4 * k + 2, 2)}, v5 offset:{64 * k + 8}")

        def uread(q):
            return a(f"ds_read_b128 {v(48 + 4 * ((q + 7) % 4), 4)}, v6 offset:{64 * (q + 7)}")
        hT, hUr = {}, {}
        for t in range(8):
            hT[8 * t + 7] = tread(8 * t + 7)
        nextU = -7

        def issue_u():
            nonlocal nextU
            q = nextU
            if q > 56:
                return
            if q in (-7, 9, 25, 41):
                a.wait(hU[(q + 7) // 16])
            hUr[q] = uread(q)
            nextU += 1
        issue_u(); issue_u(); issue_u()
        pend = []
        self.hY = None

        def epi(tau):
            r = 16 + 4 * tau
            t = 68 + 2 * (tau & 1)
            a(f"v_cvt_pk_bf16_f32 v{t}, v{r}, v{r + 1}\nv_cvt_pk_bf16_f32 v{t + 1}, v{r + 2}, v{r + 3}")
            a(f"s_add_u32 s53, s51, {tau * 327680}")
            self.hY = a(f"buffer_store_dwordx2 {v(t, 2)}, v4, s[{WS}:{WS + 3}], s53 offen sc1")
        for q in range(-7, 57):
            taus = [t for t in range(8) if 0 <= 8 * t - q <= 63]
            first = True
            for t in taus:
                k = 8 * t - q
                hs = []
                if k in hT:
                    hs.append(hT.pop(k))
                if first:
                    hs.append(hUr.pop(q))
                if hs:
                    a.wait(*hs)
                ub = v(48 + 4 * ((q + 7) % 4), 4)
                acc = v(16 + 4 * t, 4)
                a(f"v_mfma_f32_16x16x32_bf16 {acc}, {a_(4 * k, 4)}, {ub}, {'0' if q == -7 else acc}")
                if k == 0:
                    a(f"v_mfma_f32_16x16x32_bf16 {acc}, v[64:67], {ub}, {acc}")
                    pend.append([5, t])
                if first:
                    issue_u()
                    first = False
                if q < 0:
                    hT[k - 1] = tread(k - 1)
                for p_ in pend:
                    p_[0] -= 1
                if pend and pend[0][0] <= 0:
                    epi(pend.pop(0)[1])
        for p_ in pend:
            epi(p_[1])
        self.stamp("convdone")
        a("s_waitcnt vmcnt(0)")
        self.flag(PH_Y)
        self.stamp("yflag")

    def w1_setup(self):
        a = self.a
        a(f"s_and_b32 s48, s{sW}, 1\ns_mul_i32 s48, s48, 192")
        a(f"s_and_b32 s49, s{sM}, 15\ns_mul_i32 s49, s49, 192")
        for i in range(3):
            a(f"s_add_u32 s50, s48, {64 * i}")
            a(f"v_add_u32 v3, s50, v{vL}")
            self.div_const(4, 5, 3, 12, 6)
            a("v_bfe_u32 v6, v4, 2, 1\nv_sub_u32 v5, v5, v6")
            a("v_add_u32 v6, 12, v5\nv_min_u32 v5, v5, v6")
            a("v_bfe_u32 v6, v4, 2, 2\nv_lshlrev_b32 v6, 3, v6")
            a("v_lshrrev_b32 v7, 4, v4\nv_lshl_add_u32 v6, v7, 2, v6")
            a("v_and_b32 v7, 3, v4\nv_add_u32 v6, v6, v7")
            a("v_mul_u32_u24 v6, 3072, v6\nv_lshl_add_u32 v6, v5, 4, v6")
            a(f"v_add_u32 v{104 + i}, s49, v6")
        a(f"v_lshrrev_b32 v3, 4, v{vL}\nv_bfe_u32 v4, v{vL}, 2, 2\nv_lshl_add_u32 v4, v3, 2, v4")
        a("v_mul_u32_u24 v4, 192, v4")
        a(f"v_and_b32 v5, 1, v{vL}\nv_mul_u32_u24 v5, {W1U}, v5\nv_add_u32 v4, v4, v5")
        a(f"v_bfe_u32 v5, v{vL}, 1, 1\nv_lshl_add_u32 v4, v5, 3, v4")
        a(f"v_and_b32 v3, 1, v3\ns_mul_i32 s50, s{sW}, 3\nv_add_u32 v3, s50, v3")
        a("v_lshl_add_u32 v107, v3, 4, v4")
        a("v_add_u32 v3, 2, v3\nv_subrev_u32 v5, 12, v3\nv_min_u32 v3, v3, v5")
        a("v_lshl_add_u32 v108, v3, 4, v4")
        a(f"s_lshr_b32 s54, s{sW}, 1\ns_mul_i32 s54, s54, {W1U}\ns_and_b32 s50, s{sW}, 1\ns_mul_i32 s50, s50, 3072\ns_add_u32 s54, s54, s50")

    def w1_dma(self, c, base):
        out = []
        for i in range(3):
            out.append(f"s_add_u32 m0, s54, {base + 1024 * i}\ns_mov_b32 s55, {98304 * c}\n"
                       f"buffer_load_dwordx4 v{104 + i}, s[{W1}:{W1 + 3}], s55 offen lds")
        return out

    def w1_tr(self, c, base, va, vb):
        out = []
        for jj in range(3):
            for hh in range(2):
                ad, off = (va, base + 16 * jj) if jj < 2 else (vb, base)
                out.append(f"ds_read_b64_tr_b16 {W1reg(c, jj, hh)}, v{ad} offset:{off + 3072 * hh}")
        return out

    def wd_setup(self):
        a = self.a
        a(f"s_and_b32 s49, s{sM}, 7\ns_mul_i32 s49, s49, 160")
        for i in range(5):
            a(f"v_add_u32 v3, {64 * i}, v{vL}")
            self.div_const(4, 5, 3, 10, 6)
            a("v_bfe_u32 v6, v4, 2, 2\nv_mul_u32_u24 v6, 24, v6\nv_and_b32 v7, 3, v4\nv_add_u32 v6, v6, v7")
            a("v_lshrrev_b32 v7, 4, v4")
            if i == 2:
                a("v_lshl_add_u32 v8, v7, 2, v6\nv_mul_u32_u24 v8, 1280, v8\nv_lshl_add_u32 v8, v5, 4, v8\nv_add_u32 v103, s49, v8")
            a("v_lshl_add_u32 v6, v7, 3, v6\nv_mul_u32_u24 v6, 1280, v6\nv_lshl_add_u32 v6, v5, 4, v6")
            a(f"v_add_u32 v{98 + i}, s49, v6")
        a(f"s_mul_i32 s56, s{sW}, 20480\ns_add_u32 s56, s56, {L_WD}")
        a(f"s_mul_i32 s57, s{sW}, {384 * 1280}")
        a(f"v_lshrrev_b32 v3, 4, v{vL}\nv_bfe_u32 v4, v{vL}, 2, 2\nv_lshl_add_u32 v4, v3, 2, v4\nv_mul_u32_u24 v4, 160, v4")
        a(f"v_and_b32 v5, 3, v{vL}\nv_lshl_add_u32 v4, v5, 3, v4\nv_add_u32 v109, s56, v4")

    def wd_dma(self, c):
        out = []
        e, slot = c % 3, c % 4
        for i in range(5):
            rows = 96 * (c // 3) + (4 * e if e < 2 else (12 if i >= 3 else 16))
            va = 103 if (e == 2 and i == 2) else 98 + i
            out.append(f"s_add_u32 m0, s56, {slot * 5120 + 1024 * i}\ns_add_u32 s55, s57, {rows * 1280}\n"
                       f"buffer_load_dwordx4 v{va}, s[{WD}:{WD + 3}], s55 offen lds")
        return out

    def wd_tr(self, c, dst=None):
        out = []
        for jj in range(5):
            for hh in range(2):
                d = WDreg(c, jj, hh) if dst is None else v(dst + 4 * jj + 2 * hh, 2)
                out.append(f"ds_read_b64_tr_b16 {d}, v109 offset:{(c % 4) * 5120 + 2560 * hh + 32 * jj}")
        return out

    def weights_simple(self):
        a = self.a
        self.w1_setup()
        self.wd_setup()
        a("v_add_u32 v110, 81920, v107\nv_add_u32 v111, 81920, v108")
        a("s_barrier")
        for batch in (range(0, 11), range(11, 20)):
            for n, c in enumerate(batch):
                base = n * W1C if n < 5 else 81920 + (n - 5) * W1C
                for g_ in self.w1_dma(c, base):
                    a(g_)
            a("s_waitcnt vmcnt(0)\ns_barrier")
            for n, c in enumerate(batch):
                for g_ in (self.w1_tr(c, n * W1C, 107, 108) if n < 5 else self.w1_tr(c, (n - 5) * W1C, 110, 111)):
                    a(g_)
            a("s_waitcnt lgkmcnt(0)\ns_barrier")
        for rnd in range(3):
            for c in range(4 * rnd, 4 * rnd + 4):
                for g_ in self.wd_dma(c):
                    a(g_)
            a("s_waitcnt vmcnt(0)")
            if rnd < 2:
                for c in range(4 * rnd, 4 * rnd + 4):
                    for g_ in self.wd_tr(c):
                        a(g_)
                a("s_waitcnt lgkmcnt(0)")
        self.stamp("wloaded")

    def r_addr(self):
        a = self.a
        a(f"v_and_b32 v8, 7, v{vL}\nv_lshrrev_b32 v9, 3, v{vL}")
        a(f"s_lshl_b32 s48, s{sW}, 3\nv_add_u32 v9, s48, v9")
        a("v_mul_u32_u24 v3, 1280, v8\nv_lshl_add_u32 v3, v9, 4, v3")
        a("v_lshlrev_b32 v4, 8, v9\nv_lshl_add_u32 v4, v8, 4, v4")
        a(f"s_lshl_b32 s48, s{sW}, 12\nv_lshlrev_b32 v5, 6, v{vL}\nv_add_u32 v5, s48, v5")
        a(f"v_lshrrev_b32 v9, 4, v{vL}\nv_lshlrev_b32 v6, 8, v9")
        a(f"v_bfe_u32 v10, v{vL}, 1, 1\nv_lshl_add_u32 v6, v10, 7, v6")
        a(f"v_bfe_u32 v10, v{vL}, 2, 2\nv_lshl_add_u32 v6, v10, 4, v6")
        a(f"v_and_b32 v10, 1, v{vL}\nv_lshl_add_u32 v6, v10, 3, v6")
        a(f"s_mul_i32 s58, s{sW}, 3072\ns_add_u32 s58, s58, {L_Y}\nv_add_u32 v6, s58, v6")
        a(f"v_lshlrev_b32 v90, 5, v8\nv_add_u32 v90, {L_ST}, v90")
        a(f"v_and_b32 v9, 1, v9\nv_lshl_add_u32 v7, v9, 4, v90\ns_lshl_b32 s48, s{sW}, 2\nv_add_u32 v7, s48, v7")
        a(f"s_lshl_b32 s48, s{sG}, 5\ns_add_u32 s48, s48, s{sM}")
        a("s_mul_i32 s59, s48, 10240")
        a(f"s_lshr_b32 s49, s48, 1\ns_mul_i32 s60, s49, 20480\ns_and_b32 s49, s{sM}, 1\ns_lshl_b32 s49, s49, 7")
        a(f"s_add_u32 s60, s60, s49\ns_add_u32 s60, s60, {AB}")
        a(f"s_lshr_b32 s49, s48, 2\ns_mul_i32 s61, s49, 40960\ns_and_b32 s49, s{sM}, 3\ns_lshl_b32 s49, s49, 4")
        a(f"s_add_u32 s61, s61, s49\ns_add_u32 s61, s61, {YB}")

    def r_xload(self, layer):
        a = self.a
        srd, base, sc = (Q, 0, "") if layer == 0 else (WS, XB, "sc1")
        a(f"s_add_u32 s48, s59, {base}\ns_add_u32 s49, s48, s{sI2}")
        h = None
        for i in range(3):
            h = a(f"buffer_load_dwordx4 {v(8 + 4 * i, 4)}, v3, s[{srd}:{srd + 3}], s{48 if i < 2 else 49} offen offset:{512 * i} {sc}")
        return h

    def r_ydma(self):
        a = self.a
        h = None
        for i in range(3):
            a(f"s_add_u32 m0, s58, {1024 * i}\ns_add_u32 s48, s61, {16384 * i}")
            if i == 2:
                a(f"s_add_u32 s48, s48, s{sI2}")
            h = a(f"buffer_load_dwordx4 v5, s[{WS}:{WS + 3}], s48 offen sc1 lds")
        return h

    def unpack12(self, dst, src):
        for j in range(12):
            self.a(f"v_lshlrev_b32 v{dst + 2 * j}, 16, v{src + j}\nv_and_b32 v{dst + 2 * j + 1}, 0xffff0000, v{src + j}")

    def stats(self, X, area, out):
        a = self.a
        a(f"v_pk_add_f32 v[80:81], {v(X, 2)}, {v(X + 2, 2)}")
        a(f"v_pk_mul_f32 v[82:83], {v(X, 2)}, {v(X, 2)}")
        a(f"v_pk_add_f32 v[84:85], {v(X + 4, 2)}, {v(X + 6, 2)}")
        a(f"v_pk_mul_f32 v[86:87], {v(X + 2, 2)}, {v(X + 2, 2)}")
        for j in range(2, 12):
            if j >= 4:
                d = 80 if j % 2 == 0 else 84
                a(f"v_pk_add_f32 {v(d, 2)}, {v(d, 2)}, {v(X + 2 * j, 2)}")
            d = 82 if j % 2 == 0 else 86
            a(f"v_pk_fma_f32 {v(d, 2)}, {v(X + 2 * j, 2)}, {v(X + 2 * j, 2)}, {v(d, 2)}")
        a("v_pk_add_f32 v[80:81], v[80:81], v[84:85]\nv_pk_add_f32 v[82:83], v[82:83], v[86:87]")
        a("v_add_f32 v80, v80, v81\nv_add_f32 v82, v82, v83")
        a("v_add_f32_dpp v80, v80, v80 row_ror:8 row_mask:0xf bank_mask:0xf")
        a("v_add_f32_dpp v82, v82, v82 row_ror:8 row_mask:0xf bank_mask:0xf")
        a("v_permlane16_swap_b32 v80, v82\nv_add_f32 v80, v80, v82\nv_mov_b32 v82, v80")
        a("v_permlane32_swap_b32 v80, v82\nv_add_f32 v80, v80, v82")
        a("s_mov_b64 exec, 0x00ff00ff")
        a(f"ds_write_b32 v7, v80 offset:{256 * area}")
        a("s_mov_b64 exec, -1")
        a("s_waitcnt lgkmcnt(0)\ns_barrier")
        a(f"ds_read_b128 v[80:83], v90 offset:{256 * area}\nds_read_b128 v[84:87], v90 offset:{256 * area + 16}")
        a("s_waitcnt lgkmcnt(0)")
        a("v_pk_add_f32 v[80:81], v[80:81], v[82:83]\nv_pk_add_f32 v[84:85], v[84:85], v[86:87]")
        a("v_add_f32 v80, v80, v81\nv_add_f32 v84, v84, v85")
        a(f"v_mul_f32 v80, {1.0 / 640!r}, v80\nv_mul_f32 v84, {1.0 / 640!r}, v84")
        a("v_fma_f32 v84, -v80, v80, v84\nv_max_f32 v84, 0, v84")
        if self.o.get("mimic", 1):
            a("v_cvt_pk_bf16_f32 v84, v84, v80\nv_and_b32 v80, 0xffff0000, v84\nv_lshlrev_b32 v84, 16, v84")
            a("v_add_f32 v84, 0x3727c5ac, v84\nv_cvt_pk_bf16_f32 v84, v84, v84\nv_lshlrev_b32 v84, 16, v84")
            a("v_sqrt_f32 v84, v84\nv_cvt_pk_bf16_f32 v84, v84, v84\nv_lshlrev_b32 v84, 16, v84")
            a(f"v_rcp_f32 v{out}, v84")
        else:
            a(f"v_add_f32 v84, 0x3727c5ac, v84\nv_rsq_f32 v{out}, v84")
        a(f"v_mul_f32 v{out + 1}, v80, v{out}\nv_sub_f32 v{out + 1}, 0, v{out + 1}")

    def r_pre(self, hx):
        self.a.wait(hx)
        self.unpack12(32, 8)
        self.stats(32, 0, 88)

    def r_main(self, layer, hy):
        a = self.a
        a.wait(hy)
        for i in range(3):
            for hh in range(2):
                a(f"ds_read_b64_tr_b16 {v(20 + 4 * i + 2 * hh, 2)}, v6 offset:{1024 * i + 64 * hh}")
        a("s_waitcnt lgkmcnt(0)")
        self.unpack12(56, 20)
        for j in range(12):
            t = 92 + 2 * (j % 2)
            a(f"v_pk_fma_f32 {v(t, 2)}, {v(32 + 2 * j, 2)}, v[88:89], v[88:89] op_sel:[0,0,1] op_sel_hi:[1,0,1]")
            a(f"v_pk_fma_f32 {v(32 + 2 * j, 2)}, {v(t, 2)}, {v(56 + 2 * j, 2)}, {v(32 + 2 * j, 2)}")
        for j in range(12):
            a(f"v_cvt_pk_bf16_f32 v{8 + j}, v{32 + 2 * j}, v{33 + 2 * j}")
        a(f"s_add_u32 s48, s59, {XB}\ns_add_u32 s49, s48, s{sI2}")
        for i in range(3):
            a(f"buffer_store_dwordx4 {v(8 + 4 * i, 4)}, v3, s[{WS}:{WS + 3}], s{48 if i < 2 else 49} offen offset:{512 * i} {self.sc}")
        if self.o.get("mimic", 1):
            self.unpack12(32, 8)
        self.stats(32, 1, 88)
        for j in range(12):
            a(f"v_pk_fma_f32 {v(32 + 2 * j, 2)}, {v(32 + 2 * j, 2)}, v[88:89], v[88:89] op_sel:[0,0,1] op_sel_hi:[1,0,1]")
            a(f"v_cvt_pk_bf16_f32 v{20 + j}, v{32 + 2 * j}, v{33 + 2 * j}")
        a(f"s_add_u32 s48, s60, 8192\ns_add_u32 s49, s60, 16384\ns_add_u32 s49, s49, s{sI2}")
        for i in range(3):
            a(f"buffer_store_dwordx4 {v(20 + 4 * i, 4)}, v4, s[{WS}:{WS + 3}], s{(60, 48, 49)[i]} offen {self.sc}")
        a("s_waitcnt vmcnt(0)")
        self.flag(PH_R1 if layer == 0 else PH_R2)

    def y_wait(self):
        a = self.a
        La, Lb, Lc, Ld = a.label("noagg"), a.label("xpoll"), a.label("xdone"), a.label("noe")
        a(f"s_cmp_lg_u32 s{sW}, 0\ns_cbranch_scc1 {Lc}")
        a(f"s_cmp_lg_u32 s{sM}, 31\ns_cbranch_scc1 {La}")
        self.members(80, None, 32, clamp=19)
        self.poll(PH_Y, 80, 84)
        a(f"v_lshrrev_b32 v80, 3, v{vL}\nv_lshlrev_b32 v80, 10, v80\nv_and_b32 v81, 7, v{vL}\nv_lshl_add_u32 v80, v81, 4, v80")
        a(f"v_mov_b32 v84, v{vTAG}\nv_mov_b32 v85, v{vTAG}\nv_mov_b32 v86, v{vTAG}\nv_mov_b32 v87, v{vTAG}")
        a(f"s_lshl_b32 s48, s{sG}, 7\ns_add_u32 s48, s48, {WS_XF}")
        a(f"buffer_store_dwordx4 v[84:87], v80, s[{WS}:{WS + 3}], s48 offen sc1", optional=True)
        a(f"{La}:")
        a(f"v_and_b32 v80, 7, v{vL}\nv_lshlrev_b32 v80, 7, v80")
        a(f"s_lshl_b32 s48, s{sG}, 10\ns_add_u32 s48, s48, {WS_XF}")
        a(f"{Lb}:")
        self.guard()
        a(f"buffer_load_dword v81, v80, s[{WS}:{WS + 3}], s48 offen sc1", optional=True)
        a(f"s_waitcnt vmcnt(0)\nv_cmp_ne_u32 vcc, v81, v{vTAG}\ns_cbranch_vccnz {Lb}")
        a(f"s_cmp_lg_u32 s2, 0\ns_cbranch_scc1 {Lc}")
        a("s_mov_b64 exec, 1")
        a(f"buffer_store_dword v{vTAG}, off, s[{WS}:{WS + 3}], 0 offset:{WS_E} sc1", optional=True)
        a("s_mov_b64 exec, -1")
        a(f"{Lc}:")
        a("s_barrier")
        if self.slow:
            a("buffer_inv sc1\ns_waitcnt vmcnt(0)")

    def g1(self, layer):
        a = self.a
        a(f"v_and_b32 v5, 15, v{vL}\nv_lshlrev_b32 v5, 4, v5\ns_lshl_b32 s48, s{sW}, 8\nv_add_u32 v5, s48, v5")
        a(f"v_bfe_u32 v6, v{vL}, 4, 1\nv_mul_u32_u24 v6, 49152, v6\nv_add_u32 v5, v5, v6")
        a(f"v_lshrrev_b32 v6, 5, v{vL}\nv_lshl_add_u32 v3, v6, 10, v5\nv_lshl_add_u32 v4, v6, 3, v5\nv_add_u32 v4, 2048, v4")
        a(f"v_add_u32 v5, 40960, v{vL16}")
        a(f"s_lshr_b32 s49, s{sM}, 4\ns_lshl_b32 s50, s{sG}, 1\ns_add_u32 s50, s50, s49\ns_lshl_b32 s50, s50, 3")
        a(f"s_and_b32 s48, s{sW}, 1\ns_mul_i32 s48, s48, 20480\ns_lshr_b32 s53, s{sW}, 1\ns_lshl_b32 s53, s53, 10\ns_add_u32 s53, s53, s48")
        a(f"s_mul_i32 s51, s50, 20480\ns_add_u32 s51, s51, s53\ns_add_u32 s51, s51, {AB}")
        a(f"s_and_b32 s48, s{sM}, 15\ns_mul_i32 s48, s48, 3072\ns_mul_i32 s52, s50, 49152\ns_add_u32 s52, s52, s48\ns_add_u32 s52, s52, {HB}")
        a("s_lshl_b32 s49, s49, 4")
        self.members(6, 49, 16)
        self.poll(PH_R1 if layer == 0 else PH_R2, 6, 8)
        self.stamp(f"g1seen{layer}")

        def adma(p, t):
            a(f"s_add_u32 m0, s53, {L_RING + 40960 * (p & 1) + 2048 * t}\ns_add_u32 s55, s51, {40960 * p + 2048 * t}")
            return a(f"buffer_load_dwordx4 v{vL16}, s[{WS}:{WS + 3}], s55 offen sc1 lds")
        a("s_barrier")
        hA = {}
        for p in range(2):
            for t in range(10):
                hA[p, t] = adma(p, t)
        ACC = (16, 40)

        def bread(p, ks, ab):
            ad = vL16 if p & 1 == 0 else 5
            return a(f"ds_read_b128 {v(64 + 8 * (ks % 3) + 4 * ab, 4)}, v{ad} offset:{L_RING + 20480 * ab + 1024 * ks}")

        def epilogue(p):
            X = ACC[p & 1]
            ops = []
            for j in range(12):
                ops.append(f"v_permlane16_swap_b32 v{X + j}, v{X + 12 + j}")
            for j in range(12):
                ops.append(f"v_max_f32 v{X + j}, 0, v{X + j}")
            for j in range(6):
                ops.append(f"v_pk_mul_f32 {v(X + 2 * j, 2)}, {v(X + 2 * j, 2)}, {v(X + 12 + 2 * j, 2)}")
            for j in range(6):
                ops.append(f"v_cvt_pk_bf16_f32 v{88 + j}, v{X + 2 * j}, v{X + 2 * j + 1}")
            ops.append(f"s_add_u32 s55, s52, {98304 * p}\nbuffer_store_dwordx4 v[88:91], v3, s[{WS}:{WS + 3}], s55 offen {self.sc}")
            ops.append(f"buffer_store_dwordx2 v[92:93], v4, s[{WS}:{WS + 3}], s55 offen {self.sc}")
            return ops
        for p in range(4):
            X = ACC[p & 1]
            side = epilogue(p - 1) if p > 0 else []
            dmas = [(p + 1, t) for t in range(10)] if 1 <= p <= 2 else []
            if p == 0:
                a.wait(hA[0, 1])
            else:
                a.wait(hA[p, 9])
            a("s_barrier")
            hB = {}
            for ks in range(2):
                for ab in range(2):
                    hB[ks, ab] = bread(p, ks, ab)
            for ks in range(20):
                for j in range(6):
                    jj, ab = j // 2, j % 2
                    if jj == 0:
                        a.wait(hB[ks, ab])
                    acc = v(X + 12 * ab + 4 * jj, 4)
                    a(f"v_mfma_f32_16x16x32_bf16 {acc}, {W1reg(ks, jj)}, {v(64 + 8 * (ks % 3) + 4 * ab, 4)}, {'0' if ks == 0 else acc}")
                    if j == 0 and p == 0 and ks + 2 in (4, 10):
                        a.wait(hA[0, 4 if ks + 2 == 4 else 9])
                        a("s_barrier")
                    if j < 2 and ks + 2 < 20:
                        hB[ks + 2, j] = bread(p, ks + 2, j)
                    elif j == 3 and dmas and ks % 2 == 1:
                        pp, t = dmas.pop(0)
                        hA[pp, t] = adma(pp, t)
                    elif ks >= 1 and side and j >= 2:
                        a(side.pop(0))
            assert not side and not dmas
        for op in epilogue(3):
            a(op)
        self.stamp(f"g1done{layer}")
        a("s_waitcnt vmcnt(0)")
        self.flag(PH_G1A if layer == 0 else PH_G1B)

    KORD = (0, 1, 8, 2, 3, 9, 4, 5, 10, 6, 7, 11)

    def g2(self, layer):
        a = self.a
        NH = 8
        a(f"s_lshr_b32 s49, s{sM}, 3\ns_lshl_b32 s50, s{sG}, 2\ns_add_u32 s50, s50, s49\ns_lshl_b32 s50, s50, 2")
        a(f"s_mul_i32 s48, s{sW}, 12288\ns_add_u32 s48, s48, {HB}")
        for o in range(4):
            a(f"s_add_u32 s55, s{sW}, {o + 1}\ns_and_b32 s55, s55, 3")
            if o < 3:
                a(f"s_mul_i32 s62, s55, 15360\ns_add_u32 s62, s62, {L_RED + (2 - o) * 5120}\nv_add_u32 v{5 + o}, s62, v{vL16}")
            a(f"s_add_u32 s55, s55, s50\ns_mul_i32 s55, s55, 49152\ns_add_u32 s{51 + o}, s55, s48")
        a(f"s_mul_i32 s62, s{sW}, 15360\ns_add_u32 s62, s62, {L_RED}\nv_add_u32 v3, s62, v{vL16}")
        a(f"v_and_b32 v4, 15, v{vL}\nv_mul_u32_u24 v4, 1280, v4\nv_lshrrev_b32 v8, 4, v{vL}\nv_lshl_add_u32 v4, v8, 3, v4")
        a(f"s_add_u32 s62, s50, s{sW}\ns_mul_i32 s62, s62, 20480\ns_and_b32 s63, s{sM}, 7\ns_mul_i32 s63, s63, 160\ns_add_u32 s62, s62, s63")
        a(f"s_add_u32 s63, s62, {XB}")
        a(f"s_lshr_b32 s49, s{sM}, 4\ns_lshl_b32 s49, s49, 2\ns_add_u32 s49, s49, s{sW}\ns_lshl_b32 s49, s49, 2")
        self.members(8, 49, 4)
        hyd = None
        self.poll(PH_G1A if layer == 0 else PH_G1B, 8, 12)
        self.stamp(f"g2seen{layer}")
        seq = [(o, k) for o in range(4) for k in self.KORD]
        hH = {}
        nxt = 0

        def hload():
            nonlocal nxt
            if nxt >= len(seq):
                return False
            o, k = seq[nxt]
            a(f"s_add_u32 s55, s{51 + o}, {4096 * (k // 4)}")
            hH[nxt] = a(f"buffer_load_dwordx4 {v(56 + 4 * (nxt % NH), 4)}, v{vL16}, s[{WS}:{WS + 3}], s55 offen offset:{1024 * (k % 4)} sc1")
            nxt += 1
            return True
        for _ in range(NH - 1):
            hload()
        a("s_barrier")
        ACC = (16, 36)
        TMP = 88
        trq = list(self.wd_tr(8, TMP))
        hTr = None
        reds = []
        xl = []
        for i, (o, k) in enumerate(seq):
            X = ACC[o & 1]
            pos = i % 12
            if pos == 1 and o > 0:
                XP = ACC[(o - 1) & 1]
                reds = [f"ds_write_b128 v{5 + o - 1}, {v(XP + 4 * jj, 4)} offset:{1024 * jj}" for jj in range(5)]
            if o == 3 and pos == 4:
                xl = [f"buffer_load_dwordx2 {v(16 + 2 * jj, 2)}, v4, s[{WS}:{WS + 3}], s63 offen offset:{32 * jj} sc1" for jj in range(5)]
            a.wait(hH[i])
            if k >= 8:
                assert not trq
                a.wait(hTr)
            for jj in range(5):
                acc = v(X + 4 * jj, 4)
                A = WDreg(k, jj) if k < 8 else v(TMP + 4 * jj, 4)
                a(f"v_mfma_f32_16x16x32_bf16 {acc}, {A}, {v(56 + 4 * (i % NH), 4)}, {'0' if pos == 0 else acc}")
                if jj == 0:
                    hload()
                if k < 8 and trq:
                    hTr = a(trq.pop(0))
                elif reds:
                    a(reds.pop(0))
                elif xl:
                    hX = a(xl.pop(0))
            if k >= 8 and i + 1 < len(seq):
                trq = list(self.wd_tr(8 + (k - 8 + 1) % 4, TMP))
        assert not reds and not xl
        self.stamp(f"g2mf{layer}")
        a("s_waitcnt lgkmcnt(0)\ns_barrier")
        RB = [56 + 4 * j for j in range(13)] + [8, 12]
        hR = [a(f"ds_read_b128 {v(RB[3 * jj + si], 4)}, v3 offset:{5120 * si + 1024 * jj}") for jj in range(5) for si in range(3)]
        a.wait(hX)
        X = ACC[1]
        for jj in range(5):
            a(f"v_lshlrev_b32 v26, 16, v{16 + 2 * jj}\nv_and_b32 v27, 0xffff0000, v{16 + 2 * jj}")
            a(f"v_lshlrev_b32 v28, 16, v{17 + 2 * jj}\nv_and_b32 v29, 0xffff0000, v{17 + 2 * jj}")
            a.wait(hR[3 * jj + 2])
            for h2 in range(2):
                d = X + 4 * jj + 2 * h2
                r0, r1, r2 = (RB[3 * jj + si] + 2 * h2 for si in range(3))
                a(f"v_pk_add_f32 {v(r0, 2)}, {v(r0, 2)}, {v(r1, 2)}")
                a(f"v_pk_add_f32 {v(d, 2)}, {v(d, 2)}, {v(r2, 2)}")
                a(f"v_pk_add_f32 {v(d, 2)}, {v(d, 2)}, {v(r0, 2)}")
            if self.o.get("mimic", 1):
                a(f"v_cvt_pk_bf16_f32 v30, v{X + 4 * jj}, v{X + 4 * jj + 1}\nv_cvt_pk_bf16_f32 v31, v{X + 4 * jj + 2}, v{X + 4 * jj + 3}")
                a(f"v_lshlrev_b32 v{X + 4 * jj}, 16, v30\nv_and_b32 v{X + 4 * jj + 1}, 0xffff0000, v30")
                a(f"v_lshlrev_b32 v{X + 4 * jj + 2}, 16, v31\nv_and_b32 v{X + 4 * jj + 3}, 0xffff0000, v31")
            for h2 in range(2):
                d = X + 4 * jj + 2 * h2
                a(f"v_pk_add_f32 {v(d, 2)}, {v(d, 2)}, {v(26 + 2 * h2, 2)}")
            a(f"v_cvt_pk_bf16_f32 v{16 + 2 * jj}, v{X + 4 * jj}, v{X + 4 * jj + 1}\nv_cvt_pk_bf16_f32 v{17 + 2 * jj}, v{X + 4 * jj + 2}, v{X + 4 * jj + 3}")
            if layer == 0:
                a(f"buffer_store_dwordx2 {v(16 + 2 * jj, 2)}, v4, s[{WS}:{WS + 3}], s63 offen offset:{32 * jj} {self.sc}")
            else:
                a(f"buffer_store_dwordx2 {v(16 + 2 * jj, 2)}, v4, s[{OUT}:{OUT + 3}], s62 offen offset:{32 * jj}")
        if layer == 0:
            a("s_waitcnt vmcnt(0)")
            self.flag(PH_G2A)
        self.stamp(f"g2done{layer}")

    def body(self, slow):
        a = self.a
        self.slow = slow
        self.sc = "sc1" if slow else ""
        tagn = "s" if slow else "f"
        nst0 = self.nst
        self.mode_names = not slow
        done = f"L_fin_{tagn}"

        def stop(name):
            if self.stop == name:
                a(f"s_branch {done}")
        self.p0_store()
        stop("p0")
        a(f"s_cmp_ge_u32 s{sM}, 20\ns_cbranch_scc1 L_noconv_{tagn}")
        self.conv()
        a(f"L_noconv_{tagn}:")
        stop("conv")
        self.weights_simple()
        self.r_addr()
        hx = self.r_xload(0)
        self.r_pre(hx)
        self.y_wait()
        self.stamp("yseen")
        hy = self.r_ydma()
        self.r_main(0, hy)
        self.stamp("r1done")
        stop("r1")
        self.g1(0)
        stop("g1")
        self.g2(0)
        stop("g2")
        self.r_addr()
        hy = self.r_ydma()
        a(f"s_and_b32 s49, s{sM}, 24")
        self.members(88, 49, 8)
        self.poll(PH_G2A, 88, 8)
        hx = self.r_xload(1)
        self.r_pre(hx)
        self.r_main(1, hy)
        self.stamp("r2done")
        stop("r2")
        self.g1(1)
        self.g2(1)
        a(f"{done}:")
        if self.prof:
            a("s_waitcnt lgkmcnt(0)")
            a(f"s_lshl_b32 s48, s2, 2\ns_add_u32 s48, s48, s{sW}\ns_lshl_b32 s48, s48, 7\ns_add_u32 s48, s48, {WS_PROF}")
            a("s_mov_b64 exec, 1")
            for i in range(16):
                a(f"v_mov_b32 v3, s{sPROF + 2 * i}\nbuffer_store_dword v3, off, s[{WS}:{WS + 3}], s48 offset:{4 * i}")
            a(f"v_mov_b32 v3, {1 if slow else 0}\nbuffer_store_dword v3, off, s[{WS}:{WS + 3}], s48 offset:64")
        a("s_endpgm")
        self.nst = nst0

    def build(self):
        a = self.a
        self.names = []
        self.mode_names = True
        if self.prof:
            for i in range(16):
                a(f"s_mov_b32 s{sPROF + 2 * i}, 0")
        if self.o.get("safe"):
            a("s_mov_b32 s68, 100000")
        self.prologue()
        self.body(False)
        a("L_slow:")
        self.body(True)
        if self.o.get("safe"):
            a("L_bail:")
            a(f"s_mov_b64 exec, 1\nv_mov_b32 v3, 0xdead\nbuffer_store_dword v3, off, s[{WS}:{WS + 3}], 0 offset:128 sc1")
        a("L_exit:")
        body = a.text()
        head = open("interleave_layers__ssm_conv_h3__glu_gated_reglu__prompt.s.ref").read().split("; Override")[0]
        return (head + "; @launch grid=(256,1,1) block=(256,1,1) lds=163840\n"
                '.amdgcn_target "amdgcn-amd-amdhsa--gfx950"\n.text\n'
                f".globl {NAME}\n.p2align 8\n.type {NAME},@function\n{NAME}:\n" + body + "  s_endpgm\n"
                '.section .rodata,"a"\n.p2align 6\n'
                f".amdhsa_kernel {NAME}\n  .amdhsa_next_free_vgpr 512\n  .amdhsa_next_free_sgpr 102\n  .amdhsa_accum_offset 256\n"
                "  .amdhsa_group_segment_fixed_size 0\n  .amdhsa_kernarg_size 104\n  .amdhsa_user_sgpr_count 2\n"
                "  .amdhsa_user_sgpr_kernarg_segment_ptr 1\n  .amdhsa_system_sgpr_workgroup_id_x 1\n"
                "  .amdhsa_float_denorm_mode_32 3\n.end_amdhsa_kernel\n")


if __name__ == "__main__":
    g = Gen()
    t = g.build()
    out = sys.argv[1] if len(sys.argv) > 1 else "interleave_layers__ssm_conv_h3__glu_gated_reglu__prompt.s"
    open(out, "w").write(t)
    print("written", out, len(t), "bytes; auto nops", g.a.auto_nops)
```

```python
import re

_REG = re.compile(r"^(-|abs\()?([vas])(?:\[(\d+):(\d+)\]|(\d+))\)?$")


def regs_of(op):
    op = op.strip()
    if op in ("vcc", "vcc_lo", "vcc_hi"):
        return {("vcc", 0)}
    if op in ("exec", "exec_lo", "exec_hi"):
        return {("exec", 0)}
    if op == "m0":
        return {("m0", 0)}
    m = _REG.match(op)
    if not m:
        return set()
    k = m.group(2)
    if m.group(3) is not None:
        return {(k, i) for i in range(int(m.group(3)), int(m.group(4)) + 1)}
    return {(k, int(m.group(5)))}


TRANS = ("v_exp_f32", "v_log_f32", "v_rcp_f32", "v_rsq_f32", "v_sqrt_f32", "v_sin_f32", "v_cos_f32")


class Ins:
    __slots__ = ("text", "mn", "rd", "wr", "cls", "srcc", "ab", "states", "wide_data", "dpp")

    def __init__(self, text):
        self.text = text
        t = text.split(";")[0].strip()
        parts = t.split(None, 1)
        self.mn = mn = parts[0]
        rest = parts[1] if len(parts) > 1 else ""
        rest = re.sub(r"\s(op_sel|op_sel_hi|neg_lo|neg_hi|quad_perm):\[[^\]]*\]", " MOD", rest)
        ops = [o.strip() for o in rest.split(",")] if rest else []
        mods = []
        if ops:
            last = ops[-1].split()
            if last:
                ops[-1] = last[0]
                mods = last[1:]
        self.rd, self.wr = set(), set()
        self.srcc, self.ab, self.wide_data = set(), set(), set()
        self.states = 1
        self.dpp = "_dpp" in mn or any(m.startswith(("row_", "wave_", "quad_perm")) for m in mods)
        R = [regs_of(o) for o in ops]
        U = lambda l: set().union(*l) if l else set()
        if mn.startswith("v_mfma"):
            self.cls = "mfma"
            self.wr = R[0]
            self.ab = R[1] | R[2]
            self.srcc = R[3]
            self.rd = self.ab | self.srcc
        elif mn.startswith("v_cmp"):
            self.cls = "valu"
            self.wr = R[0]
            self.rd = U(R[1:])
        elif mn.startswith("v_permlane") and "swap" in mn:
            self.cls = "valu"
            self.wr = R[0] | R[1]
            self.rd = R[0] | R[1]
        elif mn.startswith(("v_readfirstlane", "v_readlane")):
            self.cls = "valu"
            self.wr = R[0]
            self.rd = U(R[1:])
        elif mn.startswith(("v_add_co", "v_sub_co", "v_addc_co", "v_subb_co")):
            self.cls = "valu"
            self.wr = R[0] | R[1]
            self.rd = U(R[2:])
        elif mn.startswith("v_"):
            self.cls = "valu"
            self.wr = R[0]
            self.rd = U(R[1:])
            if mn.startswith(("v_fmac", "v_dot2c", "v_pk_fmac", "v_writelane")) or self.dpp or "_sdwa" in mn:
                self.rd |= R[0]
        elif mn.startswith(("buffer_load", "global_load")):
            self.cls = "vmem"
            if "lds" in mods or "_lds_" in mn:
                self.rd = U(R) | {("m0", 0)}
            else:
                self.wr = R[0]
                self.rd = U(R[1:])
        elif mn.startswith(("buffer_store", "global_store", "buffer_atomic", "global_atomic")):
            self.cls = "vmem"
            self.rd = U(R)
            if mn.endswith(("x3", "x4")):
                self.wide_data = R[0] if mn.startswith("buffer") else R[1]
        elif mn.startswith(("buffer_wbl2", "buffer_inv")):
            self.cls = "vmem"
        elif mn.startswith("ds_read") or mn.startswith(("ds_bpermute", "ds_swizzle")):
            self.cls = "ds"
            self.wr = R[0]
            self.rd = U(R[1:])
        elif mn.startswith("ds_"):
            self.cls = "ds"
            self.rd = U(R)
        elif mn == "s_nop":
            self.cls = "nop"
            self.states = int(ops[0], 0) + 1
        elif mn.startswith(("s_load", "s_memtime", "s_memrealtime", "s_buffer_load")):
            self.cls = "smem"
            self.wr = R[0]
            self.rd = U(R[1:])
        elif mn.startswith(("s_cmp", "s_bitcmp", "s_cbranch", "s_branch", "s_waitcnt", "s_barrier", "s_sleep",
                            "s_setprio", "s_endpgm")):
            self.cls = "salu"
            self.rd = U(R)
            if mn in ("s_cbranch_vccnz", "s_cbranch_vccz"):
                self.rd |= {("vcc", 0)}
        elif mn.startswith("s_"):
            self.cls = "salu"
            self.wr = R[0] if R else set()
            self.rd = U(R[1:])
            if "saveexec" in mn:
                self.wr = self.wr | {("exec", 0)}
        else:
            raise ValueError("unknown instr: " + text)


def need_states(p, c):
    n = 0
    VA = lambda s: {r for r in s if r[0] in "va" and r[0] != "vcc"}
    SG = lambda s: {r for r in s if r[0] in ("s", "vcc")}
    if p.cls == "valu":
        pv, ps = VA(p.wr), SG(p.wr)
        if c.cls == "mfma" and pv & c.rd:
            n = max(n, 2)
        if c.cls == "valu":
            if c.dpp and pv & c.rd:
                n = max(n, 2)
            if c.mn.startswith("v_permlane") and pv & c.rd:
                n = max(n, 2)
            if c.mn.startswith(("v_readfirstlane", "v_readlane")) and pv & c.rd:
                n = max(n, 1)
            if ps & c.rd:
                n = max(n, 4 if c.mn.startswith(("v_readlane", "v_writelane")) else 2)
            if p.mn.startswith(TRANS) and pv & c.rd:
                n = max(n, 1)
            if "_sdwa" in p.mn and pv & (c.rd | c.wr):
                n = max(n, 1)
        if c.cls == "vmem" and ps & c.rd:
            n = max(n, 5)
        if c.cls in ("salu", "smem") and ps & c.rd:
            n = max(n, 4)
    if p.cls == "mfma":
        passes = 8 if "32x32" in p.mn else 4
        big = {4: 8, 8: 12}[passes]
        if c.cls == "mfma":
            if p.wr & c.ab:
                n = max(n, big)
            if p.wr & c.srcc and not (p.wr == c.srcc):
                n = max(n, big - 2)
            if p.wr & c.wr and not (p.wr & c.srcc):
                n = max(n, big)
        elif c.cls in ("valu", "vmem", "ds"):
            if p.wr & (c.rd | c.wr):
                n = max(n, big)
            if c.cls == "valu" and p.srcc & c.wr:
                n = max(n, passes - 1)
    if p.cls == "vmem" and p.wide_data:
        if c.cls == "valu" and p.wide_data & c.wr:
            n = max(n, 2)
        elif p.wide_data & c.wr:
            n = max(n, 1)
    if p.cls == "salu" and ("m0", 0) in p.wr and c.cls == "vmem" and ("m0", 0) in c.rd:
        n = max(n, 1)
    return n


class Asm:
    def __init__(self):
        self.items = []
        self.vm = 0
        self.lg = 0
        self.nlab = 0
        self.auto_nops = 0
        self.mute = False

    def __call__(self, text, optional=False):
        h = None
        if self.mute:
            n0 = len(self.items)
            self.mute = False
            h = self(text, optional)
            self.mute = True
            del self.items[n0:]
            return h
        for line in text.split("\n"):
            line = line.strip()
            if not line or line.startswith(";"):
                continue
            if line.endswith(":"):
                self.items.append(("label", line[:-1]))
                continue
            i = Ins(line)
            self.items.append(i)
            if i.cls == "vmem" and not optional:
                self.vm += 1
                h = ("vm", self.vm)
            elif i.cls == "ds" and not optional:
                self.lg += 1
                h = ("lg", self.lg)
        return h

    def label(self, stem):
        self.nlab += 1
        return f"L{stem}_{self.nlab}"

    def comment(self, t):
        self.items.append(("raw", "; " + t))

    def raw(self, t):
        self.items.append(("raw", t))

    def wait(self, *hs):
        v = [self.vm - h[1] for h in hs if h and h[0] == "vm"]
        l = [self.lg - h[1] for h in hs if h and h[0] == "lg"]
        t = []
        if v and min(v) <= 62:
            t.append(f"vmcnt({min(v)})")
        elif v:
            t.append("vmcnt(62)")
        if l:
            t.append(f"lgkmcnt({min(min(l), 14)})")
        if t:
            self("s_waitcnt " + " ".join(t))

    def vm_handle(self):
        return ("vm", self.vm)

    def lg_handle(self):
        return ("lg", self.lg)

    def text(self):
        out = []
        win = []
        seen, pend = set(), {}
        for it in self.items:
            if isinstance(it, tuple):
                out.append(it[1] + (":" if it[0] == "label" else ""))
                if it[0] == "label":
                    seen.add(it[1])
                    br = pend.pop(it[1], None)
                    if br is not None and br in win:
                        for x in win[win.index(br) + 1:]:
                            x.states = 0
                continue
            if it.mn.startswith(("s_cbranch", "s_branch")):
                tgt = it.text.split()[1]
                if tgt not in seen and tgt not in pend:
                    pend[tgt] = it
            need = 0
            dist = 0
            for p in reversed(win):
                n = need_states(p, it)
                if n - dist > need:
                    need = n - dist
                dist += p.states
                if dist >= 12:
                    break
            if need > 0:
                nop = Ins(f"s_nop {need - 1}")
                out.append("  " + nop.text)
                win.append(nop)
                self.auto_nops += 1
            out.append("  " + it.text)
            win.append(it)
            if len(win) > 40:
                win = win[-40:]
        return "\n".join(out) + "\n"


def v(a, n=1):
    return f"v{a}" if n == 1 else f"v[{a}:{a + n - 1}]"


def a_(a, n=1):
    return f"a{a}" if n == 1 else f"a[{a}:{a + n - 1}]"


def s(a, n=1):
    return f"s{a}" if n == 1 else f"s[{a}:{a + n - 1}]"
```

```python
import sys
from dsl import Asm, v, a_, s

NAME = "interleave_layers__ssm_conv_h3__glu_gated_reglu__prompt_kernel"

WS_E = 0
WS_XP = 4096
WS_FL = 32768
WS_XF = 77824
WS_ST = 98304
WS_PROF = 393216
AB = 1 << 20
WDS = 4 << 20
YB = 7 << 20
HB = 10 << 20
KVS = 4096
HUGE = 0x80000000
PH_P0, PH_Y, PH_R1, PH_G1A, PH_G2A, PH_R2, PH_G1B, PH_G1EA, PH_G1EB, PH_P0S = range(10)

L_RING = 0
L_WD = 81920
L_RED = 0
L_ST = 61760
L_U = 62464
L_Y = 69632
L_Y2, L_ST2 = 0, 12288
L_PF = 0
L_CS = 36864
L_RD = 40960
L_XD = 16384
L_T = 94240
W1C = 12320
W1U = 6176

WS, Q, K_, V_, H_, W1, WD, OUT, SH = 4, 8, 12, 16, 20, 24, 28, 32, 36
sG, sM, sW, sTAG, sXCC, sD = 40, 41, 42, 43, 44, 45
sT0 = 46
sFLO = 64
sFLG = 65
sI2 = 66
sROT = 67
sWK = 3
sPROF = 70

vL = 0
vTAG = 1
vL16 = 2


def W1reg(c, jj, half=None):
    base, kind = (112 + 12 * c + 4 * jj, v) if c < 12 else (12 * (c - 12) + 4 * jj, a_)
    return kind(base, 4) if half is None else kind(base + 2 * half, 2)


def WDreg(c, jj, half=None):
    base = 96 + 20 * c + 4 * jj
    return a_(base, 4) if half is None else a_(base + 2 * half, 2)


class Stream:
    def __init__(self, a):
        self.a, self.groups, self.cur, self.ops, self.h, self.at, self.n = a, [], [], [], {}, {}, 0

    @staticmethod
    def cost(t):
        return 8 if t.startswith(("v_permlane", "ds_write_b128")) else 4

    def group(self, text, key=None, front=False):
        item = [(l, key) for l in text.split("\n")]
        self.groups.insert(0, item) if front else self.groups.append(item)

    def emit(self, t, key):
        h = self.a(t)
        if h and key is not None:
            self.h[key], self.at[key] = h, self.n
        return self.cost(t)

    def gap(self, budget=8, force=False):
        self.n += 1
        while True:
            if not self.cur and self.groups:
                self.cur = self.groups.pop(0)
            if self.cur and (budget >= self.cost(self.cur[0][0]) or force):
                budget -= self.emit(*self.cur.pop(0))
                continue
            if self.ops and not self.cur:
                o = self.ops[0]
                if o[0] == "after":
                    if o[1] in self.at and (self.n - self.at[o[1]] >= o[2] or force) and (budget >= 4 or force):
                        self.ops.pop(0)
                        self.a.wait(self.h[o[1]])
                        budget -= 4
                        continue
                elif budget >= self.cost(o[1]) or force:
                    self.ops.pop(0)
                    budget -= self.emit(o[1], o[0])
                    continue
            return

    def finish(self):
        while self.cur:
            self.emit(*self.cur.pop(0))

    def valu(self, texts, key=None):
        for t in texts:
            for l in t.split("\n"):
                self.ops.append((key, l))

    def busy(self):
        return len(self.cur) + sum(map(len, self.groups)) + len(self.ops)


class Gen:
    def __init__(self, prof=False, stop=None, opts=None):
        self.a = Asm()
        self.prof = prof
        self.stop = stop
        self.nst = 0
        self.o = dict(opts or {})
        self.kr = 31 if self.o.get('kvrot', 1) else 0
        self.hG1 = None
        self.exec_narrow = False
        self.last_side = None

    def stamp(self, name):
        if not self.prof or (self.prof is not True and name not in self.prof):
            return
        if name not in self.names:
            self.names.append(name)
        i = self.names.index(name)
        assert i < 16
        self.a(f"{'s_memtime' if self.o.get('cyc') else 's_memrealtime'} s[{sPROF + 2 * i}:{sPROF + 2 * i + 1}]")

    def guard(self):
        if self.o.get("safe"):
            self.a("s_sub_u32 s68, s68, 1\ns_cbranch_scc1 L_bail")

    def srd(self, d, p, nbytes):
        self.a(f"s_mov_b32 s{d}, s{p}\ns_mov_b32 s{d + 1}, s{p + 1}\ns_mov_b32 s{d + 2}, {nbytes}\ns_mov_b32 s{d + 3}, 0x20000")

    def div_const(self, q, r, x, n, t):
        a = self.a
        a(f"v_cvt_f32_u32 v{t}, v{x}")
        a(f"v_add_f32 v{t}, 0.5, v{t}")
        a(f"v_mul_f32 v{t}, {1.0 / n!r}, v{t}")
        a(f"v_cvt_u32_f32 v{q}, v{t}")
        a(f"v_mul_u32_u24 v{t}, {n}, v{q}")
        a(f"v_sub_u32 v{r}, v{x}, v{t}")

    def flag(self, ph, val=vTAG, sc=None):
        a = self.a
        a(f"s_add_u32 s{sT0}, s{sFLO}, {ph * 4096}")
        a("s_mov_b64 exec, 1")
        a(f"buffer_store_dword v{val}, off, s[{WS}:{WS + 3}], s{sT0} {self.sc if sc is None else sc}")
        a("s_mov_b64 exec, -1")

    def poll(self, ph, vaddr, vt):
        a = self.a
        L = a.label("poll")
        a(f"s_add_u32 s{sT0}, s{sFLG}, {ph * 4096}")
        a(f"{L}:")
        self.guard()
        a(f"buffer_load_dwordx4 {v(vt, 4)}, v{vaddr}, s[{WS}:{WS + 3}], s{sT0} offen sc1")
        a("s_waitcnt vmcnt(0)")
        a(f"v_bitop3_b32 v{vt}, v{vt}, v{vt + 1}, v{vTAG} bitop3:0x7e")
        a(f"v_bitop3_b32 v{vt + 2}, v{vt + 2}, v{vt + 3}, v{vTAG} bitop3:0x7e")
        a(f"v_or_b32 v{vt}, v{vt}, v{vt + 2}")
        a(f"v_cmp_ne_u32 vcc, 0, v{vt}")
        a(f"s_cbranch_vccnz {L}")
        if self.slow:
            a("buffer_inv sc1\ns_waitcnt vmcnt(0)")

    def members(self, vd, base_s, cnt, clamp=None):
        a = self.a
        a(f"v_and_b32 v{vd}, {cnt - 1}, v{vL}")
        if clamp is not None:
            a(f"v_min_u32 v{vd}, {clamp}, v{vd}")
        if base_s is not None:
            a(f"v_add_u32 v{vd}, s{base_s}, v{vd}")
        a(f"v_lshlrev_b32 v{vd}, 4, v{vd}")

    def prologue(self):
        a = self.a
        a("s_cmp_ge_u32 s2, 256\ns_cbranch_scc1 L_exit")
        self.stamp("start")
        a("s_load_dwordx8 s[44:51], s[0:1], 0")
        a("s_load_dwordx2 s[62:63], s[0:1], 96")
        a("s_load_dwordx4 s[52:55], s[0:1], 32")
        a("s_load_dwordx4 s[56:59], s[0:1], 56")
        a("s_load_dwordx4 s[64:67], s[0:1], 72")
        a("s_getreg_b32 s3, hwreg(HW_REG_XCC_ID, 0, 4)")
        a("v_lshrrev_b32 v3, 6, v0")
        a(f"v_and_b32 v{vL}, 63, v0")
        a(f"v_readfirstlane_b32 s{sW}, v3")
        a(f"s_and_b32 s{sG}, s2, 7\ns_lshr_b32 s{sM}, s2, 3")
        a(f"v_lshlrev_b32 v{vL16}, 4, v{vL}")
        if self.o.get("cpf", 1):
            a("s_getpc_b64 s[60:61]")
            a("L_pc:")
            a(f"s_lshl_b32 s68, s{sW}, 3\ns_add_u32 s68, s68, s{sM}\ns_and_b32 s68, s68, 31")
            a(f"v_min_u32 v4, (L_fin_f-L_pc)/4096-1, v{vL}\nv_lshl_add_u32 v4, v4, 5, s68\nv_lshlrev_b32 v4, 7, v4")
            a("v_mov_b32 v5, s61\nv_add_co_u32 v4, vcc, s60, v4\nv_addc_co_u32 v5, vcc, 0, v5, vcc")
            a("global_load_dword v92, v[4:5], off")
        if self.o.get("safe"):
            a("s_mov_b32 s68, 100000")
        a(f"s_lshl_b32 s60, s{sM}, 2\ns_add_u32 s60, s60, s{sW}\ns_mul_i32 s60, s60, 20480")
        a(f"s_mul_i32 s61, s{sG}, 160\ns_add_u32 s60, s60, s61")
        a("v_mov_b32 v7, 0x80000000")
        for i in range(3):
            a(f"v_add_u32 v3, {64 * i}, v{vL}")
            self.div_const(4, 5, 3, 10, 6)
            a(f"v_mul_u32_u24 v4, 1280, v4\nv_lshl_add_u32 v4, v5, 4, v4\nv_add_u32 v{80 + i}, s60, v4")
            a(f"v_subrev_u32 v{84 + i}, 3840, v{80 + i}")
        a(f"v_cmp_gt_u32 vcc, 32, v{vL}\nv_cndmask_b32 v82, v7, v82, vcc")
        a(f"v_cmp_le_u32 vcc, 20, v{vL}")
        a("v_cndmask_b32 v3, 0, 1, vcc")
        a(f"v_mul_u32_u24 v4, 20, v3")
        a(f"v_sub_u32 v4, v{vL}, v4")
        a(f"s_mul_i32 s61, s{sG}, 640")
        a("v_lshlrev_b32 v8, 5, v4\nv_add_u32 v8, s61, v8")
        a(f"s_mul_i32 s61, s{sW}, 6144")
        a("v_mul_u32_u24 v5, 1280, v3\nv_lshl_add_u32 v5, v4, 3, v5\nv_add_u32 v5, s61, v5")
        a(f"s_mul_i32 s69, s{sG}, 80\ns_lshl_b32 s60, s{sM}, 2\ns_add_u32 s69, s69, s60\ns_add_u32 s69, s69, s{sW}")
        a("s_min_u32 s69, s69, 639\ns_lshl_b32 s60, s69, 12")
        a(f"s_mov_b32 s{H_ + 3}, 0x20000\ns_cmp_lt_u32 s{sM}, 20\ns_cselect_b32 s{H_ + 2}, 4096, 0")
        a("s_waitcnt lgkmcnt(0)")
        if self.o.get("wsoff"):
            a(f"s_add_u32 s62, s62, {self.o['wsoff']}\ns_addc_u32 s63, s63, 0")
        nt = " nt" if self.o.get("nt", 1) else ""
        a(f"s_add_u32 s{H_}, s52, s60\ns_addc_u32 s{H_ + 1}, s53, 0")

        def hloads():
            for j in range(4):
                self.hH = a(f"buffer_load_dwordx4 {v(160 + 4 * j, 4)}, v{vL16}, s[{H_}:{H_ + 3}], 0 offen offset:{1024 * j}{nt}")
        if self.o.get("hfirst", 0):
            hloads()
        self.srd(K_, 46, 2621440)
        for i in range(3):
            a(f"s_add_u32 m0, s61, {1024 * i}\ns_nop 0")
            hK = a(f"buffer_load_dwordx4 v{84 + i}, s[{K_}:{K_ + 3}], 0 offen{nt} lds")
        a(f"s_load_dword s{sTAG}, s[62:63], {WS_E}")
        self.srd(SH, 50, 5120)
        a(f"buffer_load_dwordx4 {v(152, 4)}, v8, s[{SH}:{SH + 3}], 0 offen")
        hS = a(f"buffer_load_dwordx4 {v(156, 4)}, v8, s[{SH}:{SH + 3}], 0 offen offset:16")
        self.srd(V_, 48, 2621440)
        for i in range(3):
            a(f"s_add_u32 m0, s61, {3072 + 1024 * i}\ns_nop 0")
            hV = a(f"buffer_load_dwordx4 v{80 + i}, s[{V_}:{V_ + 3}], 0 offen{nt} lds")
        if not self.o.get("hfirst", 0):
            hloads()
        self.srd(WS, 62, 0x10000000 - self.o.get("wsoff", 0))
        self.srd(Q, 44, 2621440)
        a(f"s_mov_b32 s{sXCC}, s3")
        a("s_lshr_b32 s61, s69, 1\ns_lshl_b32 s61, s61, 2")
        a(f"s_load_dword s{sD}, s[54:55], s61")
        a(f"s_cmp_lt_u32 s{sW}, 2")
        a(f"s_cselect_b32 s{W1}, s56, s58\ns_cselect_b32 s{W1 + 1}, s57, s59")
        a(f"s_mov_b32 s{W1 + 2}, 1966080\ns_mov_b32 s{W1 + 3}, 0x20000")
        self.srd(WD, 64, 1966080)
        self.srd(OUT, 66, 2621440)
        a(f"s_cmp_lt_u32 s{sW}, 2\ns_cselect_b32 s{sI2}, 0, 0x80000000")
        a(f"s_lshl_b32 s{sFLG}, s{sG}, 9\ns_add_u32 s{sFLG}, s{sFLG}, {WS_FL}")
        a(f"s_lshl_b32 s60, s{sM}, 4\ns_lshl_b32 s61, s{sW}, 2\ns_add_u32 s60, s60, s61\ns_add_u32 s{sFLO}, s{sFLG}, s60")
        a(f"s_mul_i32 s47, s{sG}, 327680\ns_add_u32 s47, s47, {AB}")
        if self.o.get("touch_kv", 1):
            a(f"s_mul_i32 s60, s{sW}, 20\nv_add_u32 v11, s60, v4\nv_add_u32 v12, s{sM}, v11\nv_and_b32 v12, {self.kr}, v12")
            a(f"v_lshlrev_b32 v11, 12, v11\nv_lshl_add_u32 v11, v12, 7, v11\nv_add_u32 v11, s47, v11")
            if not self.kr:
                a(f"s_lshl_b32 s60, s{sM}, 7\nv_add_u32 v11, s60, v11")
            a(f"s_lshl_b32 s61, s{sW}, 7\ns_add_u32 s61, s61, s{sFLG}")
            a("v_lshlrev_b32 v12, 12, v4\nv_add_u32 v12, s61, v12")
            a(f"v_cmp_le_u32 vcc, 20, v{vL}\nv_cndmask_b32 v11, v11, v12, vcc")
            a("s_mov_b64 exec, 0x1fffffff")
            a(f"buffer_load_dword v93, v11, s[{WS}:{WS + 3}], 0 offen {self.o.get('tpol', 'sc1')}")
            a("s_mov_b64 exec, -1")
        a(f"s_lshl_b32 s61, s{sW}, 1\nv_add_u32 v3, s61, v3\nv_lshlrev_b32 v3, 4, v3\nv_cmp_gt_u32 vcc, 40, v{vL}")
        for c in range(4):
            a(f"v_lshl_add_u32 v9, v4, 2, {c}\nv_add_u32 v10, s{sM}, v9\nv_and_b32 v10, {self.kr}, v10")
            if not self.kr:
                a(f"v_mov_b32 v10, s{sM}")
            a(f"v_lshl_add_u32 v9, v9, 12, v3\nv_lshl_add_u32 v9, v10, 7, v9\nv_cndmask_b32 v{224 + c}, v7, v9, vcc")
        a("s_waitcnt lgkmcnt(0)")
        a(f"s_mul_i32 s{sTAG}, s{sTAG}, 1664525\ns_add_u32 s{sTAG}, s{sTAG}, 1013904223")
        a(f"v_mov_b32 v{vTAG}, s{sTAG}")
        a(f"s_add_u32 s60, s{sTAG}, s{sXCC}")
        a(f"s_lshl_b32 s69, s{sG}, 11\ns_add_u32 s69, s69, {WS_XP}")
        a("v_mov_b32 v96, s60")
        a(f"v_and_b32 v97, 31, v{vL}\nv_lshlrev_b32 v95, 4, v97\nv_lshlrev_b32 v97, 6, v97")
        self.stamp("issued")
        a("v_mov_b32 v15, v5")
        self.w1_setup()
        for r in range(98, 104):
            a(f"v_mov_b32 v{r}, 0")
        a(f"s_cmp_lt_u32 s{sM}, 20\ns_cbranch_scc1 L_nowd")
        self.nonconv_setup()
        if self.o.get("hfirst", 0):
            a("s_branch L_p0")
        a("L_nowd:")
        if self.o.get("hfirst", 0):
            a("v_mov_b32 v87, v15")
            self.tbuild(False)
            a("v_mov_b32 v15, v87")
            a("L_p0:")
        a.wait(hK)
        hk = [a(f"ds_read_b64 {v(112 + 2 * i, 2)}, v15 offset:{160 * i}") for i in range(11)]
        a.wait(hS)
        self.stamp("kin")
        for c in range(4):
            for t in range(4):
                src = 152 + 2 * c + t // 2
                if t % 2 == 0:
                    a(f"v_lshlrev_b32 v{16 + 4 * t + c}, 16, v{src}")
                else:
                    a(f"v_and_b32 v{16 + 4 * t + c}, 0xffff0000, v{src}")

        def unpack2(dst, src):
            a(f"v_lshlrev_b32 v{dst}, 16, v{src}\nv_and_b32 v{dst + 1}, 0xffff0000, v{src}")
            a(f"v_lshlrev_b32 v{dst + 2}, 16, v{src + 1}\nv_and_b32 v{dst + 3}, 0xffff0000, v{src + 1}")
        for i in range(3):
            a.wait(hk[i])
            unpack2(32 + 4 * i, 112 + 2 * i)
        for r in range(8):
            a.wait(hk[r + 3])
            unpack2(32 + 4 * (r + 3), 118 + 2 * r)
            for p in range(2):
                u = 192 + 4 * r + 2 * p
                a(f"v_pk_mul_f32 {v(u, 2)}, {v(16 + 12 + 2 * p, 2)}, {v(32 + 4 * r + 2 * p, 2)}")
                for t in (2, 1, 0):
                    a(f"v_pk_fma_f32 {v(u, 2)}, {v(16 + 4 * t + 2 * p, 2)}, {v(32 + 4 * (r + 3 - t) + 2 * p, 2)}, {v(u, 2)}")
            if r == 7:
                a.wait(hV)
                hv = [a(f"ds_read_b64 {v(134 + 2 * i, 2)}, v15 offset:{3072 + 160 * i}") for i in range(8)]
        for r in range(8):
            a.wait(hv[r])
            unpack2(76, 134 + 2 * r)
            for p in range(2):
                u = 192 + 4 * r + 2 * p
                a(f"v_pk_mul_f32 {v(u, 2)}, {v(u, 2)}, {v(76 + 2 * p, 2)}")
        for c in range(4):
            for j in range(4):
                a(f"v_cvt_pk_bf16_f32 v{16 + 4 * c + j}, v{192 + 4 * (7 - 2 * j) + c}, v{192 + 4 * (6 - 2 * j) + c}")
        self.stamp("p0calc")

    def decide(self, name, need_data, fill=()):
        a = self.a
        a(f"s_add_u32 s{sT0}, s{sFLG}, {PH_P0 * 4096}\ns_mov_b32 s63, 0")
        h = a(f"buffer_load_dwordx4 v[8:11], v95, s[{WS}:{WS + 3}], s{sT0} offen sc1")
        for f_ in fill:
            a(f_)
        a.wait(h)
        if not self.slow:
            L, F, R = a.label("dec"), a.label("fast"), a.label("again")
            a(f"{L}:")
            a("v_bitop3_b32 v8, v8, v9, v96 bitop3:0x7e\nv_bitop3_b32 v10, v10, v11, v96 bitop3:0x7e\nv_or_b32 v8, v8, v10")
            a(f"v_cmp_ne_u32 vcc, 0, v8\ns_cbranch_vccz {F}")
            self.guard()
            a(f"s_add_u32 s63, s63, 1\ns_and_b32 s62, s63, 7\ns_cbranch_scc1 {R}")
            a(f"buffer_load_dword v94, v97, s[{WS}:{WS + 3}], s69 offen sc1", optional=True)
            a(f"s_waitcnt vmcnt(0)\nv_subrev_u32 v94, s{sTAG}, v94\nv_cmp_lt_u32 vcc, 15, v94\ns_cbranch_vccnz {R}")
            a(f"v_cmp_ne_u32 vcc, s{sXCC}, v94\ns_cbranch_vccnz L_slow_{name}")
            a(f"{R}:")
            a(f"buffer_load_dwordx4 v[8:11], v95, s[{WS}:{WS + 3}], s{sT0} offen sc1", optional=True)
            a(f"s_waitcnt vmcnt(0)\ns_branch {L}")
            a(f"{F}:")
        else:
            a.mute = False
            a(f"L_slow_{name}:")
            a("buffer_wbl2 sc1\ns_waitcnt vmcnt(0)")
            self.flag(PH_P0S)
            if need_data:
                self.poll(PH_P0S, 95, 8)

    def p0_store(self):
        a = self.a
        for c in range(4):
            a(f"buffer_store_dwordx4 {v(16 + 4 * c, 4)}, v{224 + c}, s[{WS}:{WS + 3}], s47 offen")

    def p0_flag(self):
        self.a("s_waitcnt vmcnt(0)")
        self.flag(PH_P0, 96, "")
        self.stamp("p0done")
        a = self.a
        a("v_mov_b32 v88, v96\nv_mov_b32 v89, v96\nv_mov_b32 v90, v96\nv_mov_b32 v91, v96")
        a(f"s_lshl_b32 s61, s{sM}, 6\ns_add_u32 s61, s61, s69")
        a(f"s_cmp_eq_u32 s{sW}, 0\ns_cselect_b32 s61, s61, 0x80000000")
        a("s_mov_b64 exec, 15")
        a(f"buffer_store_dwordx4 v[88:91], v{vL16}, s[{WS}:{WS + 3}], s61 offen sc1")
        a("s_mov_b64 exec, -1")

    def x_early(self, nt=True):
        a = self.a
        a(f"v_and_b32 v14, 7, v{vL}\nv_lshrrev_b32 v15, 3, v{vL}\ns_lshl_b32 s59, s{sW}, 3\nv_add_u32 v15, s59, v15")
        a("v_mul_u32_u24 v14, 1280, v14\nv_lshl_add_u32 v14, v15, 4, v14")
        a(f"s_lshl_b32 s59, s{sG}, 5\ns_add_u32 s59, s59, s{sM}\ns_mul_i32 s59, s59, 10240\ns_add_u32 s60, s59, s{sI2}")
        for i in range(3):
            a(f"buffer_load_dwordx4 {v(72 + 4 * i, 4)}, v14, s[{Q}:{Q + 3}], s{59 if i < 2 else 60} offen offset:{512 * i}{' nt' if nt and self.o.get('ntq', 0) else ''}")

    @staticmethod
    def w1_place(n):
        return n * W1C if n < 5 else 81920 + (n - 5) * W1C

    def w1_tr_batch(self, first, cnt):
        out = []
        for n in range(cnt):
            out += self.w1_tr(first + n, n * W1C, 107, 108) if n < 5 else self.w1_tr(first + n, (n - 5) * W1C, 110, 111)
        return out

    def w1_roll(self, h_all, h5):
        a = self.a
        tr = self.w1_tr_batch(0, 11)
        refill = []
        for n in range(9):
            refill += self.w1_dma(11 + n, self.w1_place(n))
        if h_all is None:
            h = self.y_flag(["s_barrier"] + tr[:30])
            self.stamp("yflag")
            a("s_waitcnt lgkmcnt(0)\ns_barrier")
            rest = tr[30:]
            for i, g_ in enumerate(refill[:15]):
                if i == 2:
                    self.y_pass(h)
                a(g_)
                for t_ in rest[:3]:
                    a(t_)
                rest = rest[3:]
            a("s_waitcnt lgkmcnt(0)\ns_barrier")
        elif h5 is None:
            a.wait(h_all)
            a("s_barrier")
            for t_ in tr[:30]:
                a(t_)
            a("s_waitcnt lgkmcnt(0)\ns_barrier")
            rest = tr[30:]
            for g_ in refill[:15]:
                a(g_)
                for t_ in rest[:3]:
                    a(t_)
                rest = rest[3:]
            a("s_waitcnt lgkmcnt(0)\ns_barrier")
        else:
            a.wait(h5)
            a("s_barrier")
            for t_ in tr[:30]:
                a(t_)
            a("s_waitcnt lgkmcnt(0)\ns_barrier")
            for g_ in refill[:15]:
                a(g_)
            a.wait(h_all)
            a("s_barrier")
            for t_ in tr[30:]:
                a(t_)
            a("s_waitcnt lgkmcnt(0)\ns_barrier")
        self.wq2 = refill[15:]

    def tbuild(self, flag_inside):
        a = self.a
        a(f"s_mul_i32 s48, s{sW}, 16640\ns_add_u32 s48, s48, {L_T}")
        a(f"v_add_u32 v3, s48, v{vL16}")
        a(f"v_and_b32 v4, 1, v{vL}\nv_lshlrev_b32 v4, 4, v4\nv_add_u32 v4, s48, v4")

        def tables(X, ad, off):
            for i in range(4):
                a(f"v_alignbit_b32 v{8 + i}, v{176 + i}, v{X + i}, 16")
            for i in range(4):
                a(f"v_alignbit_b32 v{12 + i}, v{177 + i}, v{176 + i}, 16")
            a(f"ds_write_b128 v{ad}, {v(X, 4)} offset:{off}")
            a(f"ds_write_b128 v{ad}, v[8:11] offset:{off + 4160}")
            a(f"ds_write_b128 v{ad}, v[176:179] offset:{off + 8320}")
            a(f"ds_write_b128 v{ad}, v[12:15] offset:{off + 12480}")
        a.wait(self.hH)
        for j in range(4):
            X = 160 + 4 * j
            if j < 3:
                a(f"v_readfirstlane_b32 s49, v{X + 4}\nv_readfirstlane_b32 s50, v{X + 5}")
            a(f"v_mov_b32 v176, v{X + 1}\nv_mov_b32 v177, v{X + 2}\nv_mov_b32 v178, v{X + 3}")
            a("v_mov_b32 v179, s49\nv_mov_b32 v180, s50" if j < 3 else "v_mov_b32 v179, 0\nv_mov_b32 v180, 0")
            a(f"v_mov_b32_dpp v179, v{X} wave_shl:1 row_mask:0xf bank_mask:0xf")
            a(f"v_mov_b32_dpp v180, v{X + 1} wave_shl:1 row_mask:0xf bank_mask:0xf")
            tables(X, 3, 32 + 1024 * j)
            if j == 1 and flag_inside:
                self.p0_flag()
        a("v_readfirstlane_b32 s49, v160\nv_readfirstlane_b32 s50, v161")
        for r in (184, 185, 186, 187, 176, 177, 178):
            a(f"v_mov_b32 v{r}, 0")
        a(f"v_and_b32 v8, 1, v{vL}\nv_sub_u32 v8, 0, v8")
        a("v_and_b32 v179, s49, v8\nv_and_b32 v180, s50, v8")
        tables(184, 4, 0)

    def conv(self):
        a = self.a
        if self.o.get("hfirst", 0):
            a(f"s_mul_i32 s48, s{sW}, 16640\ns_add_u32 s48, s48, {L_T}")
        else:
            self.tbuild(True)
        a(f"s_mul_i32 s49, s{sW}, 4608\ns_add_u32 s49, s49, {L_U}")
        a(f"v_min_u32 v4, 29, v{vL}\nv_lshlrev_b32 v4, 4, v4\nv_add_u32 v4, s49, v4")
        a("ds_write_b128 v4, v[184:187]")
        a(f"v_and_b32 v7, 15, v{vL}\nv_lshrrev_b32 v8, 4, v{vL}")
        a("v_add_u32 v9, 1, v7\nv_and_b32 v9, 3, v9")
        a("v_lshlrev_b32 v10, 3, v8\nv_sub_u32 v10, v7, v10")
        a("v_sub_u32 v11, v10, v9\nv_add_u32 v11, 25, v11\nv_lshlrev_b32 v11, 1, v11")
        a("v_mul_u32_u24 v9, 4160, v9\nv_add3_u32 v5, v9, v11, s48")
        a("v_lshlrev_b32 v6, 5, v7\nv_lshl_add_u32 v6, v8, 4, v6\nv_add_u32 v6, s49, v6")
        a(f"s_and_b32 s50, s{sW}, 1\ns_lshl_b32 s50, s50, 4\ns_lshr_b32 s50, s{sD}, s50\ns_and_b32 s50, s50, 0xffff")
        a("v_sub_u32 v11, -9, v10")
        a("v_and_b32 v12, 1, v11\nv_lshlrev_b32 v12, 4, v12\nv_lshlrev_b32 v12, v12, s50")
        a("v_ashrrev_i32 v11, 1, v11")
        for j in range(4):
            a(f"v_cmp_eq_u32 vcc, {j}, v11\nv_cndmask_b32 v{64 + j}, 0, v12, vcc")
        a("v_lshrrev_b32 v9, 1, v7\nv_mul_u32_u24 v9, 40960, v9\nv_and_b32 v10, 1, v7\nv_lshlrev_b32 v10, 5, v10")
        a("v_lshlrev_b32 v8, 3, v8\nv_add3_u32 v4, v9, v10, v8")
        a(f"s_mul_i32 s51, s{sG}, 80\ns_lshl_b32 s52, s{sM}, 2\ns_add_u32 s52, s52, s{sW}\ns_add_u32 s51, s51, s52")
        a(f"s_lshl_b32 s51, s51, 6\ns_add_u32 s51, s51, {YB}")
        a(f"s_lshl_b32 s53, s52, 7\ns_and_b32 s53, s53, {self.kr << 7}")
        for i in range(4):
            a(f"s_add_u32 s50, s53, {1024 * i}\nv_add_u32 v{224 + i}, s50, v{vL16}\nv_and_b32 v{224 + i}, 4095, v{224 + i}")
        a(f"s_mul_i32 s52, s52, {KVS}\ns_add_u32 s52, s52, s47")
        if self.o.get("hfirst", 0):
            self.p0_flag()
        self.stamp("tbuilt")
        self.decide("conv", True)
        self.stamp("p0seen")
        a("s_add_u32 s49, s49, 480")
        hU = []
        for i in range(4):
            a("s_mov_b32 m0, s49")
            hU.append(a(f"buffer_load_dwordx4 v{224 + i}, s[{WS}:{WS + 3}], s52 offen sc1 lds"))
            a("s_add_u32 s49, s49, 1024")
        self.x_early()
        if self.o.get("touchy", 0):
            a(f"v_mul_u32_u24 v8, 40960, v{vL}")
            a(f"buffer_load_dword v9, v8, s[{WS}:{WS + 3}], s51 offen sc1")
        a("s_waitcnt lgkmcnt(0)")
        wq = []
        for n in range(11):
            wq += self.w1_dma(n, self.w1_place(n))
        nm = 0
        hW = None

        def tread(k):
            a(f"ds_read_b64 {a_(4 * k, 2)}, v5 offset:{64 * k}")
            return a(f"ds_read_b64 {a_(4 * k + 2, 2)}, v5 offset:{64 * k + 8}")

        def uread(q):
            return a(f"ds_read_b128 {v(48 + 4 * ((q + 7) % 4), 4)}, v6 offset:{64 * (q + 7)}")
        hT, hUr = {}, {}
        for t in range(8):
            hT[8 * t + 7] = tread(8 * t + 7)
        nextU = -7

        def issue_u():
            nonlocal nextU
            q = nextU
            if q > 56:
                return
            if q in (-7, 9, 25, 41):
                a.wait(hU[(q + 7) // 16])
            hUr[q] = uread(q)
            nextU += 1
        issue_u(); issue_u(); issue_u()
        pend = []
        self.hY = None

        def epi(tau):
            r = 16 + 4 * tau
            t = 68 + 2 * (tau & 1)
            a(f"v_cvt_pk_bf16_f32 v{t}, v{r}, v{r + 1}\nv_cvt_pk_bf16_f32 v{t + 1}, v{r + 2}, v{r + 3}")
            a(f"s_add_u32 s53, s51, {tau * 327680}")
            self.hY = a(f"buffer_store_dwordx2 {v(t, 2)}, v4, s[{WS}:{WS + 3}], s53 offen sc1")
        for q in range(-7, 57):
            taus = [t for t in range(8) if 0 <= 8 * t - q <= 63]
            first = True
            for t in taus:
                k = 8 * t - q
                hs = []
                if k in hT:
                    hs.append(hT.pop(k))
                if first:
                    hs.append(hUr.pop(q))
                if hs:
                    a.wait(*hs)
                if nm in (0, 64, 168, 240):
                    self.stamp(f"c{nm}")
                ub = v(48 + 4 * ((q + 7) % 4), 4)
                acc = v(16 + 4 * t, 4)
                a(f"v_mfma_f32_16x16x32_bf16 {acc}, {a_(4 * k, 4)}, {ub}, {'0' if q == -7 else acc}")
                if k == 0:
                    a(f"v_mfma_f32_16x16x32_bf16 {acc}, v[64:67], {ub}, {acc}")
                    pend.append([5, t])
                if first:
                    issue_u()
                    first = False
                if q < 0:
                    hT[k - 1] = tread(k - 1)
                nm += 1
                if q == 1 and t == taus[0]:
                    a("s_barrier")
                if wq and self.o.get("cw1", 230) >= nm >= self.o.get("cw0", 60) and (nm - self.o.get("cw0", 60)) % self.o.get("cws", 9) == 0:
                    hW = a(wq.pop(0))
                for p_ in pend:
                    p_[0] -= 1
                if pend and pend[0][0] <= 0:
                    epi(pend.pop(0)[1])
        for p_ in pend:
            epi(p_[1])
        self.stamp("convdone")
        a.wait(self.hY)
        if wq:
            h = self.y_flag(wq[:3])
            self.stamp("yflag")
            self.y_pass(h)
            for g_ in wq[3:]:
                a(g_)
            self.w1_roll(a.vm_handle(), None)
        else:
            self.w1_roll(None, None)

    def nonconv_setup(self):
        a = self.a
        a(f"s_mul_i32 s48, s{sG}, 12\ns_add_u32 s48, s48, s{sM}\ns_sub_u32 s48, s48, 20")
        a(f"s_and_b32 s49, s48, 1\ns_lshl_b32 s49, s49, 2\ns_add_u32 s49, s49, s{sW}")
        a("s_lshr_b32 s48, s48, 1")
        a("s_mul_i32 s52, s49, 48\ns_add_u32 s52, s52, s48\ns_mul_i32 s52, s52, 5120")
        a(f"s_add_u32 s52, s52, {WDS}")
        a("s_mul_i32 s49, s49, 160")
        a("s_mul_i32 s50, s48, 43691\ns_lshr_b32 s50, s50, 17\ns_mul_i32 s51, s50, 3\ns_sub_u32 s51, s48, s51")
        a("s_mul_i32 s50, s50, 96\ns_lshl_b32 s53, s51, 2\ns_cmp_eq_u32 s51, 2\ns_cselect_b32 s53, 16, s53")
        a("s_cselect_b32 s51, 4, 8\ns_add_u32 s50, s50, s53\ns_mul_i32 s50, s50, 1280\ns_add_u32 s49, s49, s50")
        a(f"s_mul_i32 s56, s{sW}, 5120\ns_add_u32 s56, s56, 61760\ns_cmp_eq_u32 s{sW}, 3\ns_cselect_b32 s56, 155840, s56")
        for i in range(5):
            a(f"v_add_u32 v3, {64 * i}, v{vL}")
            self.div_const(4, 5, 3, 10, 6)
            a("v_bfe_u32 v6, v4, 2, 2\nv_mul_u32_u24 v6, 24, v6\nv_and_b32 v7, 3, v4\nv_add_u32 v6, v6, v7")
            a("v_lshrrev_b32 v7, 4, v4\nv_mad_u32_u24 v6, v7, s51, v6")
            a(f"v_mul_u32_u24 v6, 1280, v6\nv_lshl_add_u32 v{98 + i}, v5, 4, v6")
        a(f"v_lshrrev_b32 v3, 4, v{vL}\nv_bfe_u32 v4, v{vL}, 2, 2\nv_lshl_add_u32 v4, v3, 2, v4\nv_mul_u32_u24 v4, 160, v4")
        a(f"v_and_b32 v5, 3, v{vL}\nv_lshl_add_u32 v4, v5, 3, v4\nv_add_u32 v103, s56, v4")
        a("s_mov_b32 s57, s49")
        if self.o.get("wdearly", 0):
            self.wd_dma(True)
        a(f"s_sub_u32 s48, s{sM}, 20\ns_lshl_b32 s48, s48, 1\ns_and_b32 s50, s{sW}, 1\ns_add_u32 s48, s48, s50\ns_lshl_b32 s48, s48, 3")
        a(f"v_and_b32 v3, 7, v{vL}\nv_add_u32 v3, s48, v3")
        self.div_const(4, 5, 3, 6, 6)
        a(f"v_mul_u32_u24 v4, 3072, v4\nv_lshl_add_u32 v4, v5, 7, v4\nv_lshrrev_b32 v5, 3, v{vL}\nv_add_u32 v5, s{sROT}, v5")
        for j in range(3):
            a(f"v_add_u32 v6, {8 * j}, v5\nv_subrev_u32 v7, 20, v6\nv_min_u32 v6, v6, v7\nv_mul_u32_u24 v6, 98304, v6\nv_add_u32 v{84 + j}, v4, v6")
        a(f"v_mov_b32 v7, 0x80000000\nv_cmp_gt_u32 vcc, 32, v{vL}\nv_cndmask_b32 v86, v7, v86, vcc")

    def wd_dma(self, opt):
        for i in range(5):
            self.a(f"s_add_u32 m0, s56, {1024 * i}\ns_nop 0")
            h = self.a(f"buffer_load_dwordx4 v{98 + i}, s[{WD}:{WD + 3}], s57 offen lds", optional=opt)
        return h

    def nonconv(self):
        a = self.a
        if self.o.get("wdearly", 0):
            return self.nonconv_early()
        self.p0_flag()
        hD = self.wd_dma(False)
        a("s_barrier")

        def warm(j):
            return f"buffer_load_dword v92, v{84 + j}, s[{W1}:{W1 + 3}], 0 offen"
        wq = []
        for n in range(11):
            wq += self.w1_dma(n, self.w1_place(n))
        n1 = 3 * self.o.get("nc1", 4)
        for g_ in [warm(0)] + wq[:n1]:
            a(g_)
        a.wait(hD)
        for jj in range(5):
            for hh in range(2):
                a(f"ds_read_b64_tr_b16 {v(16 + 4 * jj + 2 * hh, 2)}, v103 offset:{2560 * hh + 32 * jj}")
        a("s_waitcnt lgkmcnt(0)\ns_add_u32 s53, s52, 4096")
        for jj in range(5):
            a(f"buffer_store_dwordx4 {v(16 + 4 * jj, 4)}, v{vL16}, s[{WS}:{WS + 3}], s{52 if jj < 4 else 53} offen offset:{1024 * (jj % 4)} sc1")
        self.decide("nc", False, wq[n1:21] + [warm(1)])
        h = self.y_flag(wq[21:27])
        self.stamp("yflag")
        h5 = a.vm_handle()
        for g_ in wq[27:] + [warm(2)]:
            a(g_)
        self.x_early()
        self.y_pass(h)
        self.w1_roll(a.vm_handle(), h5)

    def nonconv_early(self):
        a = self.a
        self.p0_flag()
        for jj in range(5):
            for hh in range(2):
                a(f"ds_read_b64_tr_b16 {v(16 + 4 * jj + 2 * hh, 2)}, v103 offset:{2560 * hh + 32 * jj}")
        a("s_waitcnt lgkmcnt(0)\ns_add_u32 s53, s52, 4096")
        for jj in range(5):
            a(f"buffer_store_dwordx4 {v(16 + 4 * jj, 4)}, v{vL16}, s[{WS}:{WS + 3}], s{52 if jj < 4 else 53} offen offset:{1024 * (jj % 4)} sc1")
        a("s_barrier")

        def warm(j):
            a(f"buffer_load_dword v92, v{84 + j}, s[{W1}:{W1 + 3}], 0 offen")
        wq = []
        for n in range(11):
            wq += self.w1_dma(n, self.w1_place(n))
        warm(0)
        for _ in range(3 * self.o.get("nc1", 4)):
            a(wq.pop(0))
        self.decide("nc", False)
        a("s_waitcnt vmcnt(0)")
        self.y_pass(self.y_flag())
        self.stamp("yflag")
        for _ in range(15 - 3 * self.o.get("nc1", 4)):
            a(wq.pop(0))
        h5 = a.vm_handle()
        warm(1)
        for g_ in wq:
            a(g_)
        warm(2)
        self.x_early()
        self.w1_roll(a.vm_handle(), h5)

    def w1_setup(self):
        a = self.a
        a(f"s_and_b32 s48, s{sW}, 1\ns_mul_i32 s48, s48, 192")
        a(f"s_and_b32 s49, s{sM}, 15\ns_mul_i32 s49, s49, 192")
        for i in range(3):
            a(f"s_add_u32 s50, s48, {64 * i}")
            a(f"v_add_u32 v3, s50, v{vL}")
            self.div_const(4, 5, 3, 12, 6)
            a("v_bfe_u32 v6, v4, 2, 1\nv_sub_u32 v5, v5, v6")
            a("v_add_u32 v6, 12, v5\nv_min_u32 v5, v5, v6")
            a("v_bfe_u32 v6, v4, 2, 2\nv_lshlrev_b32 v6, 3, v6")
            a("v_lshrrev_b32 v7, 4, v4\nv_lshl_add_u32 v6, v7, 2, v6")
            a("v_and_b32 v7, 3, v4\nv_add_u32 v6, v6, v7")
            a("v_mul_u32_u24 v6, 3072, v6\nv_lshl_add_u32 v6, v5, 4, v6")
            a(f"v_add_u32 v{104 + i}, s49, v6")
        a(f"v_lshrrev_b32 v3, 4, v{vL}\nv_bfe_u32 v4, v{vL}, 2, 2\nv_lshl_add_u32 v4, v3, 2, v4")
        a("v_mul_u32_u24 v4, 192, v4")
        a(f"v_and_b32 v5, 1, v{vL}\nv_mul_u32_u24 v5, {W1U}, v5\nv_add_u32 v4, v4, v5")
        a(f"v_bfe_u32 v5, v{vL}, 1, 1\nv_lshl_add_u32 v4, v5, 3, v4")
        a(f"v_and_b32 v3, 1, v3\ns_mul_i32 s50, s{sW}, 3\nv_add_u32 v3, s50, v3")
        a("v_lshl_add_u32 v107, v3, 4, v4")
        a("v_add_u32 v3, 2, v3\nv_subrev_u32 v5, 12, v3\nv_min_u32 v3, v3, v5")
        a("v_lshl_add_u32 v108, v3, 4, v4")
        a("v_add_u32 v110, 81920, v107\nv_add_u32 v111, 81920, v108")
        if self.o.get("rot", 1):
            a(f"s_mul_i32 s{sROT}, s{sG}, 10\ns_lshr_b32 s{sROT}, s{sROT}, 3\ns_lshl_b32 s{sROT}, s{sROT}, 1")
        else:
            a(f"s_mov_b32 s{sROT}, 0")
        a(f"s_mul_i32 s{sWK}, s{sROT}, 98304")
        a(f"s_lshr_b32 s54, s{sW}, 1\ns_mul_i32 s54, s54, {W1U}\ns_and_b32 s50, s{sW}, 1\ns_mul_i32 s50, s50, 3072\ns_add_u32 s54, s54, s50")

    def w1_dma(self, c, base):
        out = []
        for i in range(3):
            nxt = f"\ns_add_u32 s{sWK}, s{sWK}, 98304\ns_cmp_eq_u32 s{sWK}, 1966080\ns_cselect_b32 s{sWK}, 0, s{sWK}" if i == 2 else ""
            out.append(f"s_add_u32 m0, s54, {base + 1024 * i}\ns_nop 0\n"
                       f"buffer_load_dwordx4 v{104 + i}, s[{W1}:{W1 + 3}], s{sWK} offen lds" + nxt)
        return out

    def w1_tr(self, c, base, va, vb):
        out = []
        for jj in range(3):
            for hh in range(2):
                ad, off = (va, base + 16 * jj) if jj < 2 else (vb, base)
                out.append(f"ds_read_b64_tr_b16 {W1reg(c, jj, hh)}, v{ad} offset:{off + 3072 * hh}")
        return out

    def wds_setup(self):
        a = self.a
        a(f"s_and_b32 s57, s{sM}, 7\ns_lshl_b32 s57, s57, 2\ns_add_u32 s57, s57, s{sW}\ns_mul_i32 s57, s57, 61440\ns_add_u32 s57, s57, {WDS}")
        a(f"s_mul_i32 s56, s{sW}, 20480\ns_add_u32 s56, s56, {L_WD}")

    def wds_loads(self):
        out = []
        for i in range(60):
            c, jj = divmod(i, 5)
            o = i * 1024
            t = f"s_add_u32 s54, s57, {o}\n" if i % 4 == 0 else ""
            if c < 8:
                out.append(t + f"buffer_load_dwordx4 {WDreg(c, jj)}, v{vL16}, s[{WS}:{WS + 3}], s54 offen offset:{o & 4095} sc1")
            else:
                out.append(t + f"s_add_u32 m0, s56, {(o & ~4095) - 40960}\ns_nop 0\nbuffer_load_dwordx4 v{vL16}, s[{WS}:{WS + 3}], s54 offen offset:{o & 4095} sc1 lds")
        return out

    def mix(self, fn, side, every):
        a = self.a
        outer = a.items
        start = len(outer)
        orig_call = Asm.__call__
        state = {"n": 0, "busy": False}

        def hooked(self_, text, optional=False):
            h = None
            for line in text.split("\n"):
                hh = orig_call(self_, line, optional)
                h = hh or h
                if state["busy"] or not line.strip().startswith("v_"):
                    continue
                state["n"] += 1
                if side and state["n"] % every == 0 and not self.exec_narrow:
                    state["busy"] = True
                    self.last_side = orig_call(self_, side.pop(0))
                    state["busy"] = False
            return h
        Asm.__call__ = hooked
        try:
            fn()
        finally:
            Asm.__call__ = orig_call

    def y_addr(self, vd, layer):
        a = self.a
        return [f"s_lshl_b32 s48, s{sW}, 12\nv_lshlrev_b32 v{vd}, 6, v{vL}", f"v_add_u32 v{vd}, s48, v{vd}",
                f"s_mul_i32 s58, s{sW}, 3072\ns_add_u32 s58, s58, {(L_Y, L_Y2)[layer]}",
                f"s_lshl_b32 s48, s{sG}, 3\ns_lshr_b32 s61, s{sM}, 2", "s_add_u32 s61, s61, s48\ns_mul_i32 s61, s61, 40960",
                f"s_and_b32 s48, s{sM}, 3\ns_lshl_b32 s48, s48, 4", f"s_add_u32 s61, s61, s48\ns_add_u32 s61, s61, {YB}"]

    def r_addr(self, layer):
        a = self.a
        a(f"v_and_b32 v8, 7, v{vL}\nv_lshrrev_b32 v9, 3, v{vL}")
        a(f"s_lshl_b32 s48, s{sW}, 3\nv_add_u32 v9, s48, v9")
        a("v_lshlrev_b32 v3, 4, v8")
        a(f"s_lshl_b32 s48, s{sROT}, 2\nv_subrev_u32 v10, s48, v9")
        for i in range(3):
            a(f"v_add_u32 v11, {32 * i}, v10\nv_add_u32 v98, 80, v11\nv_min_u32 v11, v11, v98")
            a(f"v_lshl_add_u32 v{99 + i}, v11, 8, v3")
        a(f"v_lshrrev_b32 v9, 4, v{vL}\nv_lshlrev_b32 v6, 8, v9")
        a(f"v_bfe_u32 v10, v{vL}, 1, 1\nv_lshl_add_u32 v6, v10, 7, v6")
        a(f"v_bfe_u32 v10, v{vL}, 2, 2\nv_lshl_add_u32 v6, v10, 4, v6")
        a(f"v_and_b32 v10, 1, v{vL}\nv_lshl_add_u32 v6, v10, 3, v6\nv_add_u32 v6, s58, v6")
        a(f"v_lshlrev_b32 v90, 5, v8\nv_add_u32 v90, {(L_ST, L_ST2)[layer]}, v90")
        a(f"v_and_b32 v9, 1, v9\nv_lshl_add_u32 v7, v9, 4, v90\ns_lshl_b32 s48, s{sW}, 2\nv_add_u32 v7, s48, v7")
        a(f"s_lshl_b32 s48, s{sG}, 5\ns_add_u32 s48, s48, s{sM}")
        a(f"s_lshl_b32 s59, s48, 7\ns_add_u32 s59, s59, {WS_ST + 32768 * layer}\ns_cmp_eq_u32 s{sW}, 0\ns_cselect_b32 s59, s59, 0x80000000")
        a(f"s_lshr_b32 s49, s48, 1\ns_mul_i32 s60, s49, 20480\ns_and_b32 s49, s{sM}, 1\ns_lshl_b32 s49, s49, 7")
        a(f"s_add_u32 s60, s60, s49\ns_add_u32 s60, s60, {AB}")

    def touch_h(self):
        a = self.a
        a(f"v_cmp_le_u32 vcc, 24, v{vL}\nv_cndmask_b32 v10, 0, 1, vcc\nv_mul_u32_u24 v11, 24, v10\nv_sub_u32 v11, v{vL}, v11")
        a("v_min_u32 v11, 23, v11\nv_mul_u32_u24 v10, 49152, v10\nv_lshl_add_u32 v14, v11, 7, v10")
        a(f"s_mul_i32 s63, s{sW}, 98304\ns_add_u32 s63, s63, s52")
        return f"buffer_load_dword v15, v14, s[{WS}:{WS + 3}], s63 offen {self.o.get('tpol', 'sc1')}"

    def r_ydma(self, va):
        out = []
        for i in range(3):
            t = f"s_add_u32 m0, s58, {1024 * i}\ns_add_u32 s48, s61, {16384 * i}\n"
            if i == 2:
                t += f"s_add_u32 s48, s48, s{sI2}\n"
            out.append(t + f"buffer_load_dwordx4 v{va}, s[{WS}:{WS + 3}], s48 offen sc1 lds")
        return out

    def unpack12(self, dst, src):
        for j in range(12):
            self.a(f"v_lshlrev_b32 v{dst + 2 * j}, 16, v{src + j}\nv_and_b32 v{dst + 2 * j + 1}, 0xffff0000, v{src + j}")

    def stats(self, X, area, out, mid=None, record=False):
        a = self.a
        a(f"v_pk_add_f32 v[80:81], {v(X, 2)}, {v(X + 2, 2)}")
        a(f"v_pk_mul_f32 v[82:83], {v(X, 2)}, {v(X, 2)}")
        a(f"v_pk_add_f32 v[84:85], {v(X + 4, 2)}, {v(X + 6, 2)}")
        a(f"v_pk_mul_f32 v[86:87], {v(X + 2, 2)}, {v(X + 2, 2)}")
        for j in range(2, 12):
            if j >= 4:
                d = 80 if j % 2 == 0 else 84
                a(f"v_pk_add_f32 {v(d, 2)}, {v(d, 2)}, {v(X + 2 * j, 2)}")
            d = 82 if j % 2 == 0 else 86
            a(f"v_pk_fma_f32 {v(d, 2)}, {v(X + 2 * j, 2)}, {v(X + 2 * j, 2)}, {v(d, 2)}")
        a("v_pk_add_f32 v[80:81], v[80:81], v[84:85]\nv_pk_add_f32 v[82:83], v[82:83], v[86:87]")
        a("v_add_f32 v80, v80, v81\nv_add_f32 v82, v82, v83")
        a("v_add_f32_dpp v80, v80, v80 row_ror:8 row_mask:0xf bank_mask:0xf")
        a("v_add_f32_dpp v82, v82, v82 row_ror:8 row_mask:0xf bank_mask:0xf")
        a("v_permlane16_swap_b32 v80, v82\nv_add_f32 v80, v80, v82\nv_mov_b32 v82, v80")
        a("v_permlane32_swap_b32 v80, v82\nv_add_f32 v80, v80, v82")
        a("s_mov_b64 exec, 0x00ff00ff")
        a(f"ds_write_b32 v7, v80 offset:{256 * area}")
        a("s_mov_b64 exec, -1")
        if mid:
            mid()
        a("s_waitcnt lgkmcnt(0)\ns_barrier")
        a(f"ds_read_b128 v[80:83], v90 offset:{256 * area}\nds_read_b128 v[84:87], v90 offset:{256 * area + 16}")
        a("s_waitcnt lgkmcnt(0)")
        a("v_pk_add_f32 v[80:81], v[80:81], v[82:83]\nv_pk_add_f32 v[84:85], v[84:85], v[86:87]")
        a("v_add_f32 v80, v80, v81\nv_add_f32 v84, v84, v85")
        a(f"v_mul_f32 v80, {1.0 / 640!r}, v80\nv_mul_f32 v84, {1.0 / 640!r}, v84")
        a("v_fma_f32 v84, -v80, v80, v84\nv_max_f32 v84, 0, v84")
        if self.o.get("mimic", 1):
            a("v_cvt_pk_bf16_f32 v84, v84, v80\nv_and_b32 v80, 0xffff0000, v84\nv_lshlrev_b32 v84, 16, v84")
            a("v_add_f32 v84, 0x3727c5ac, v84\nv_cvt_pk_bf16_f32 v84, v84, v84\nv_lshlrev_b32 v84, 16, v84")
            a("v_sqrt_f32 v84, v84\nv_cvt_pk_bf16_f32 v84, v84, v84\nv_lshlrev_b32 v84, 16, v84")
            a(f"v_rcp_f32 v{out}, v84")
        else:
            a(f"v_add_f32 v84, 0x3727c5ac, v84\nv_rsq_f32 v{out}, v84")
        if record:
            a(f"v_mul_f32 v{out + 1}, v{out}, v{out}\nv_sub_f32 v{out}, 0, v80")
        else:
            a(f"v_mul_f32 v{out + 1}, v80, v{out}\nv_sub_f32 v{out + 1}, 0, v{out + 1}")

    def r_pre(self, src=72):
        self.unpack12(32, src)
        self.stats(32, 0, 88)

    def r_yread(self):
        a = self.a
        for i in range(3):
            for hh in range(2):
                a(f"ds_read_b64_tr_b16 {v(20 + 4 * i + 2 * hh, 2)}, v6 offset:{1024 * i + 64 * hh}")
        a("s_waitcnt lgkmcnt(0)")
        self.unpack12(56, 20)

    def r_main(self, layer, between=()):
        a = self.a
        a(f"s_add_u32 s49, s60, s{sI2}")
        for j in range(12):
            t = 92 + 2 * (j % 2)
            a(f"v_pk_fma_f32 {v(t, 2)}, {v(32 + 2 * j, 2)}, v[88:89], v[88:89] op_sel:[0,0,1] op_sel_hi:[1,0,1]")
            a(f"v_pk_fma_f32 {v(32 + 2 * j, 2)}, {v(t, 2)}, {v(56 + 2 * j, 2)}, {v(32 + 2 * j, 2)}")
            a(f"v_cvt_pk_bf16_f32 v{20 + j}, v{32 + 2 * j}, v{33 + 2 * j}")
            if j % 4 == 3:
                i = j // 4
                hA = a(f"buffer_store_dwordx4 {v(20 + 4 * i, 4)}, v{99 + i}, s[{WS}:{WS + 3}], s{(60, 60, 49)[i]} offen {self.sc}")
        self.stamp(f"rst{layer}")

        def mid():
            for t_ in between[:12]:
                a(t_)
            a.wait(hA)
            self.flag(PH_R1 if layer == 0 else PH_R2)
            self.stamp(f"rfl{layer}")
            for t_ in between[12:]:
                a(t_)
        self.stats(32, 1, 88, mid, True)
        a(f"v_mov_b32 v90, v{vTAG}\nv_mov_b32 v91, v{vTAG}\ns_mov_b64 exec, 0xff")
        a(f"buffer_store_dwordx4 v[88:91], v3, s[{WS}:{WS + 3}], s59 offen {self.sc}")
        a("s_mov_b64 exec, -1")

    def r2(self):
        a = self.a
        a(f"s_and_b32 s49, s{sM}, 24")
        self.members(88, 49, 8)
        a.wait(self.hy2)
        self.r_yread()
        self.poll(PH_G2A, 88, 8)
        self.stamp("r2seen")
        a(f"s_add_u32 s49, s60, s{sI2}")
        hs = [a(f"buffer_load_dwordx4 {v(8 + 4 * i, 4)}, v{99 + i}, s[{WS}:{WS + 3}], s{(60, 60, 49)[i]} offen sc1") for i in range(3)]
        for j in range(12):
            if j % 4 == 0:
                a.wait(hs[j // 4])
            a(f"v_lshlrev_b32 v{32 + 2 * j}, 16, v{8 + j}\nv_and_b32 v{33 + 2 * j}, 0xffff0000, v{8 + j}")
        self.stats(32, 0, 88)
        self.r_main(1)

    def colsum(self, chunks):
        a = self.a
        if chunks[0] == 0:
            a("v_mov_b32 v8, 0x3f803f80")
            for i in range(4):
                a(f"v_accvgpr_write_b32 a{252 + i}, v8")
        for c in chunks:
            for jj in range(3):
                acc = a_(240 + 4 * jj, 4)
                a(f"v_mfma_f32_16x16x32_bf16 {acc}, {W1reg(c, jj)}, a[252:255], {'0' if c == 0 else acc}")

    def y_flag(self, fill=()):
        a = self.a
        self.flag(PH_Y)
        h = a.vm_handle()
        for f_ in fill:
            a(f_)
        a.wait(h)
        a(f"s_add_u32 s{sT0}, s{sFLG}, {PH_Y * 4096}")
        return a(f"buffer_load_dwordx4 v[8:11], v95, s[{WS}:{WS + 3}], s{sT0} offen sc1")

    def y_pass(self, h):
        a = self.a
        L = a.label("ypass")
        a(f"v_lshrrev_b32 v12, 3, v{vL}\nv_lshlrev_b32 v12, 10, v12\nv_and_b32 v13, 7, v{vL}\nv_lshl_add_u32 v12, v13, 4, v12")
        a(f"s_lshl_b32 s48, s{sG}, 7\ns_add_u32 s48, s48, {WS_XF}")
        a.wait(h)
        a(f"v_bitop3_b32 v8, v8, v9, v{vTAG} bitop3:0x7e\nv_bitop3_b32 v10, v10, v11, v{vTAG} bitop3:0x7e\nv_or_b32 v8, v8, v10")
        a(f"v_cmp_ne_u32 vcc, 0, v8\ns_cbranch_vccnz {L}")
        a(f"v_mov_b32 v8, v{vTAG}\nv_mov_b32 v9, v{vTAG}\nv_mov_b32 v10, v{vTAG}\nv_mov_b32 v11, v{vTAG}")
        a(f"buffer_store_dwordx4 v[8:11], v12, s[{WS}:{WS + 3}], s48 offen sc1", optional=True)
        self.stamp("agg")
        a(f"{L}:")

    def y_wait(self):
        a = self.a
        La, Lb, Lc, Ld = a.label("noagg"), a.label("xpoll"), a.label("xdone"), a.label("noe")
        a(f"s_cmp_lg_u32 s{sW}, 0\ns_cbranch_scc1 {Lc}")
        if self.slow:
            a(f"s_cmp_lg_u32 s{sM}, 31\ns_cbranch_scc1 {La}")
            self.members(80, None, 32)
            self.poll(PH_Y, 80, 84)
            a(f"v_lshrrev_b32 v80, 3, v{vL}\nv_lshlrev_b32 v80, 10, v80\nv_and_b32 v81, 7, v{vL}\nv_lshl_add_u32 v80, v81, 4, v80")
            a(f"v_mov_b32 v84, v{vTAG}\nv_mov_b32 v85, v{vTAG}\nv_mov_b32 v86, v{vTAG}\nv_mov_b32 v87, v{vTAG}")
            a(f"s_lshl_b32 s48, s{sG}, 7\ns_add_u32 s48, s48, {WS_XF}")
            a(f"buffer_store_dwordx4 v[84:87], v80, s[{WS}:{WS + 3}], s48 offen sc1", optional=True)
            a(f"{La}:")
        a(f"v_and_b32 v80, 7, v{vL}\nv_lshlrev_b32 v80, 7, v80")
        a(f"s_lshl_b32 s48, s{sG}, 10\ns_add_u32 s48, s48, {WS_XF}")
        a(f"{Lb}:")
        self.guard()
        a(f"buffer_load_dword v81, v80, s[{WS}:{WS + 3}], s48 offen sc1", optional=True)
        a(f"s_waitcnt vmcnt(0)\nv_cmp_ne_u32 vcc, v81, v{vTAG}\ns_cbranch_vccnz {Lb}")
        a(f"s_cmp_lg_u32 s2, 0\ns_cbranch_scc1 {Lb}e")
        a("s_mov_b64 exec, 1")
        a(f"buffer_store_dword v{vTAG}, off, s[{WS}:{WS + 3}], 0 offset:{WS_E} sc1", optional=True)
        a(f"s_mov_b64 exec, -1\n{Lb}e:")
        a(f"s_barrier\ns_branch {Ld}\n{Lc}:")
        a(f"s_waitcnt vmcnt(0)\ns_barrier\n{Ld}:")
        if self.slow:
            a("buffer_inv sc1\ns_waitcnt vmcnt(0)")

    PORD = (0, 2, 1, 3)
    PFK = (0, 1, 2, 3, 8, 9, 10, 4, 5)

    def check4(self, h, vt, reload):
        a = self.a
        L, F = a.label("chk"), a.label("chkd")
        a.wait(h)
        a(f"{L}:")
        a(f"v_bitop3_b32 v{vt}, v{vt}, v{vt + 1}, v{vTAG} bitop3:0x7e\nv_bitop3_b32 v{vt + 2}, v{vt + 2}, v{vt + 3}, v{vTAG} bitop3:0x7e")
        a(f"v_or_b32 v{vt}, v{vt}, v{vt + 2}\nv_cmp_ne_u32 vcc, 0, v{vt}\ns_cbranch_vccz {F}")
        self.guard()
        a(reload, optional=True)
        a(f"s_waitcnt vmcnt(0)\ns_branch {L}\n{F}:")
        if self.slow:
            a("buffer_inv sc1\ns_waitcnt vmcnt(0)", optional=True)

    def check_st(self, h, reload, r):
        a = self.a
        L, F = a.label("chs"), a.label("chsd")
        a.wait(h)
        a(f"{L}:\nv_bitop3_b32 v{r + 2}, v{r + 2}, v{r + 3}, v{vTAG} bitop3:0x7e\nv_cmp_ne_u32 vcc, 0, v{r + 2}\ns_cbranch_vccz {F}")
        self.guard()
        a(reload, optional=True)
        a(f"s_waitcnt vmcnt(0)\ns_branch {L}\n{F}:")

    def g1(self, layer):
        a = self.a
        PORD = self.PORD
        a(f"v_and_b32 v5, 15, v{vL}\nv_lshlrev_b32 v5, 4, v5\nv_bfe_u32 v6, v{vL}, 4, 1\nv_lshl_add_u32 v7, v6, 8, v5")
        a(f"s_lshl_b32 s48, s{sW}, 8\nv_add_u32 v5, s48, v5\nv_mul_u32_u24 v6, 49152, v6\nv_add_u32 v5, v5, v6")
        a(f"v_lshrrev_b32 v6, 5, v{vL}\nv_lshl_add_u32 v3, v6, 10, v5\nv_lshl_add_u32 v4, v6, 3, v5\nv_add_u32 v4, 2048, v4")
        a(f"v_mul_u32_u24 v13, 96, v6\ns_mul_i32 s48, s{sW}, 192\ns_add_u32 s48, s48, {L_CS}\nv_add_u32 v13, s48, v13")
        a(f"v_add_u32 v5, 40960, v{vL16}")
        if layer == 1:
            for i in range(6):
                a(f"ds_read_b128 {v(88 + 4 * i, 4)}, v13 offset:{16 * i}")
        a(f"s_lshr_b32 s49, s{sM}, 4\ns_lshl_b32 s50, s{sG}, 1\ns_add_u32 s50, s50, s49\ns_lshl_b32 s50, s50, 3")
        a(f"s_and_b32 s48, s{sW}, 1\ns_mul_i32 s48, s48, 20480\ns_lshr_b32 s53, s{sW}, 1\ns_lshl_b32 s53, s53, 10\ns_add_u32 s53, s53, s48")
        a(f"s_mul_i32 s51, s50, 20480\ns_add_u32 s51, s51, s53\ns_add_u32 s51, s51, {AB}")
        a(f"s_and_b32 s48, s{sM}, 15\ns_mul_i32 s48, s48, 3072\ns_mul_i32 s52, s50, 49152\ns_add_u32 s52, s52, s48\ns_add_u32 s52, s52, {HB}")
        a(f"s_lshl_b32 s62, s50, 8\ns_add_u32 s62, s62, {WS_ST + 32768 * layer}")
        a(f"s_lshr_b32 s48, s{sM}, 3\ns_lshl_b32 s59, s{sG}, 2\ns_add_u32 s59, s59, s48\ns_mul_i32 s59, s59, {4 * 49152}")
        a(f"s_mul_i32 s48, s{sW}, 12288\ns_add_u32 s59, s59, s48\ns_add_u32 s59, s59, {HB}\ns_mul_i32 s60, s{sW}, 9216")
        if layer == 0 and self.o.get("touch_h", 0):
            self.wq.insert(0, self.touch_h())
        a("s_lshl_b32 s49, s49, 4")
        self.members(6, 49, 16)
        a("s_waitcnt lgkmcnt(0)")
        self.poll(PH_R1 if layer == 0 else PH_R2, 6, 8)
        self.stamp(f"g1seen{layer}")

        def adma(p, t):
            t_ = f"buffer_load_dwordx4 v{vL16}, s[{WS}:{WS + 3}], s48 offen offset:{2048 * (t & 1)} sc1 lds"
            if t & 1:
                return t_
            return f"s_add_u32 m0, s53, {L_RING + 40960 * (p & 1) + 2048 * t}\ns_add_u32 s48, s51, {40960 * PORD[p] + 2048 * t}\n" + t_
        a("s_barrier")
        S = Stream(a)
        for t in range(4):
            S.h["A", 0, t] = a(adma(0, t))
        a(f"s_lshl_b32 s55, s{sW}, 2\ns_add_u32 s49, s49, s55")
        self.members(6, 49, 4)
        if layer == 0:
            self.colsum(range(11, 20))
            for j in range(12):
                a(f"v_accvgpr_read_b32 v{88 + j}, a{240 + j}\nv_accvgpr_read_b32 v{100 + j}, a{240 + j}")
            for j in range(12):
                a(f"v_permlane16_swap_b32 v{88 + j}, v{100 + j}")
        ACC = (16, 40)

        def bread(n, ab):
            p, ks = divmod(n, 20)
            ad = vL16 if p & 1 == 0 else 5
            return a(f"ds_read_b128 {v(64 + 8 * (n % 3) + 4 * ab, 4)}, v{ad} offset:{L_RING + 20480 * ab + 1024 * ks}")

        def stload(p):
            return f"s_add_u32 s55, s62, {512 * PORD[p]}\nbuffer_load_dwordx4 {v(8 + 4 * (p & 1), 4)}, v7, s[{WS}:{WS + 3}], s55 offen sc1"

        def epi_a(p, packed):
            X = ACC[p & 1]
            ops = [f"v_permlane16_swap_b32 v{X + j}, v{X + 12 + j}" for j in range(12)]
            if packed:
                ops += [f"v_pk_fma_f32 {v(X + 2 * j, 2)}, {v(88 + 2 * j, 2)}, {v(8 + 4 * (p & 1), 2)}, {v(X + 2 * j, 2)} op_sel_hi:[1,0,1]" for j in range(12)]
            else:
                ops += [f"v_fmac_f32 v{X + j}, v{8 + 4 * (p & 1)}, v{88 + j}" for j in range(24)]
            return ops

        def epi_b(p, packed=False):
            X = ACC[p & 1]
            ops = []
            if packed:
                ops += [f"v_max_f32 v{X + j}, 0, v{X + j}" for j in range(12)]
                ops += [f"v_pk_mul_f32 {v(X + 12 + 2 * j, 2)}, {v(X + 12 + 2 * j, 2)}, {v(8 + 4 * (p & 1), 2)} op_sel:[0,1] op_sel_hi:[1,1]" for j in range(6)]
                ops += [f"v_pk_mul_f32 {v(X + 2 * j, 2)}, {v(X + 2 * j, 2)}, {v(X + 12 + 2 * j, 2)}" for j in range(6)]
            for j in range(0 if packed else 12):
                ops += [f"v_max_f32 v{X + j}, 0, v{X + j}", f"v_mul_f32 v{X + 12 + j}, v{9 + 4 * (p & 1)}, v{X + 12 + j}"]
            for j in range(0 if packed else 12):
                ops.append(f"v_mul_f32 v{X + j}, v{X + j}, v{X + 12 + j}")
            for j in range(6):
                ops.append(f"v_cvt_pk_bf16_f32 v{X + 12 + j}, v{X + 2 * j}, v{X + 2 * j + 1}")
            ops.append(f"s_add_u32 s49, s52, {98304 * PORD[p]}\nbuffer_store_dwordx4 {v(X + 12, 4)}, v3, s[{WS}:{WS + 3}], s49 offen {self.sc}")
            ops.append(f"buffer_store_dwordx2 {v(X + 16, 2)}, v4, s[{WS}:{WS + 3}], s49 offen {self.sc}")
            return ops
        sync = {4: (0, 3), 8: (0, 6), 14: (0, 9), 20: (1, 9), 40: (2, 9), 60: (3, 9)}
        war = (22, 42, 62)
        dplan = {}
        for i, t in enumerate(range(4, 10)):
            dplan.setdefault(i // 2, []).append((0, t))
        for t in range(10):
            dplan.setdefault(3 + (t * 9) // 10, []).append((1, t))
            dplan.setdefault(22 + t, []).append((2, t))
            dplan.setdefault(42 + t, []).append((3, t))
        wq = self.wq if layer == 0 else []
        PE = PH_G1EA if layer == 0 else PH_G1EB
        epoll = f"s_add_u32 s55, s{sFLG}, {PE * 4096}\nbuffer_load_dwordx4 v[12:15], v6, s[{WS}:{WS + 3}], s55 offen sc1"
        nE, nP = self.o.get("nE", 60), self.o.get("nP", 65)
        pf = []
        for i, k in enumerate(self.PFK):
            b = (0, 0, 0, 0, 4, 4, 4, 7, 7)[i]
            t_ = f"s_add_u32 m0, s60, {L_PF + 1024 * i}\ns_add_u32 s48, s59, {1024 * k}\n" if i == b and not (layer == 0 and False) else ""
            if layer == 0 and i != b:
                t_ = f"s_add_u32 m0, s60, {L_PF + 1024 * b}\ns_nop 0\n"
            pf.append(t_ + f"buffer_load_dwordx4 v{vL16}, s[{WS}:{WS + 3}], s48 offen offset:{1024 * (i - b)} sc1 lds")
        a.wait(S.h["A", 0, 1])
        a("s_barrier")
        hB = {}
        for n in range(2):
            for ab in range(2):
                hB[n, ab] = bread(n, ab)
        for n in range(80):
            p, ks = divmod(n, 20)
            X = ACC[p & 1]
            if n % 20 == 0:
                self.stamp(f"g1s{n}_{layer}")
            for pp, t in dplan.get(n, []):
                S.group(adma(pp, t), ("A", pp, t))
            if nP + 3 < n and pf:
                S.group(pf.pop(0), ("PF", 8 - len(pf)))
            for _ in range((1 if (12 <= n < 22 or 32 <= n < 42 or n >= 52) else 0) + (1 if n in (13, 15, 17, 19) or (len(wq) > 78 - n >= 0) else 0)):
                if wq and not (52 <= n < 60 and S.ops):
                    S.group(wq.pop(0))
            if ks == 15:
                S.group(stload(p), "S", True)
            if ks == 0:
                assert not S.ops, (n, len(S.ops))
            if n == nP:
                S.group(epoll, "P", True)
            a.wait(hB[n, 1])
            for j in range(6):
                jj, ab = j // 2, j % 2
                acc = v(X + 12 * ab + 4 * jj, 4)
                a(f"v_mfma_f32_16x16x32_bf16 {acc}, {W1reg(ks, jj)}, {v(64 + 8 * (n % 3) + 4 * ab, 4)}, {'0' if ks == 0 else acc}")
                b = 8
                if j == 0:
                    if n + 2 in sync:
                        a.wait(S.h[("A",) + sync[n + 2]])
                        a("s_barrier")
                        b = 0
                    elif n in war:
                        a("s_barrier")
                        b = 4
                if j < 2 and n + 2 < 80:
                    hB[n + 2, j] = bread(n + 2, j)
                    b -= 4
                if j == 5:
                    b -= 4
                if j == 2:
                    if (ks == 1 and p > 0) or n in (nE, nP + 3):
                        S.finish()
                    if ks == 1 and p > 0:
                        self.check_st(S.h["S"], stload(p - 1), 8 + 4 * ((p - 1) & 1))
                        S.valu(epi_a(p - 1, False) + epi_b(p - 1), ("E", p - 1))
                        b = 0
                    elif n == nE:
                        a.wait(S.h["E", 1])
                        self.flag(PE)
                        b = 0
                    elif n == nP + 3:
                        self.check4(S.h["P"], 12, epoll)
                        b = 0
                S.gap(b)
            if layer == 1 and n == 57 and self.o.get("wb", 0):
                self.writeback()
        assert not wq and not pf and not S.busy(), (len(wq), len(pf), S.busy())
        self.pfpos = [self.PFK.index(k) for k in self.KORD[:9]]
        self.hPF = [S.h["PF", x] for x in self.pfpos]
        hS = S.h["S"]
        self.stamp(f"g1s80_{layer}")
        a(f"v_add_u32 v8, s60, v{vL16}")
        a.wait(self.hPF[1])
        self.hPB = [a(f"ds_read_b128 {v(64 + 4 * i, 4)}, v8 offset:{L_PF + 1024 * self.pfpos[i]}") for i in range(2)]
        self.check_st(hS, stload(3), 12)
        a(f"v_add_u32 v7, s56, v{vL16}")
        for op in epi_a(3, True):
            a(op)
        if self.o.get("xtail", 1):
            for op in epi_b(3, True):
                self.hG1 = a(op) or self.hG1
        if layer == 0:
            a(f"v_lshrrev_b32 v10, 5, v{vL}\nv_mul_u32_u24 v10, 96, v10\ns_mul_i32 s48, s{sW}, 192\ns_add_u32 s48, s48, {L_CS}\nv_add_u32 v10, s48, v10")
            for i in range(6):
                a(f"ds_write_b128 v10, {v(88 + 4 * i, 4)} offset:{16 * i}")
        self.tail = [] if self.o.get("xtail", 1) else epi_b(3)
        self.stamp(f"g1done{layer}")

    def writeback(self):
        a = self.a
        L = a.label("nowb")
        a(f"s_or_b32 s48, s{sM}, s{sW}\ns_cmp_lg_u32 s48, 0\ns_cbranch_scc1 {L}")
        a("buffer_wbl2 sc1", optional=True)
        a(f"s_branch {L}b\n{L}:\ns_mov_b32 s48, 0x80000000")
        a(f"buffer_load_dword v15, off, s[{WS}:{WS + 3}], s48")
        a(f"{L}b:")

    KORD = (0, 1, 8, 2, 3, 9, 4, 5, 10, 6, 7, 11)

    def g2(self, layer):
        a = self.a
        KORD = self.KORD
        TMP, NPF = 88, 9
        ACC = (16, 36)
        PL = PH_G1A if layer == 0 else PH_G1B
        free = {76: 0, 80: 0, 84: 0, 56: 8, 60: 8, 8: 8}
        if layer == 1:
            free.update({112 + 4 * i: 0 for i in range(self.o.get("nh2", 6))})
        slot = {i: 64 + 4 * (i % 3) for i in range(NPF)}
        hH = dict(enumerate(self.hPB))
        nxt = NPF
        lpoll = lambda d: f"s_add_u32 s55, s{sFLG}, {PL * 4096}\nbuffer_load_dwordx4 {v(d, 4)}, v6, s[{WS}:{WS + 3}], s55 offen sc1"
        nL = self.o.get("nL", (17, 15))[layer]
        free[8] = nL + 1
        S = Stream(a)
        hbase = {}

        def hload(i):
            nonlocal nxt
            if nxt >= 48 or (nxt >= 24 and i <= nL):
                return False
            c = [r for r, f_ in free.items() if f_ <= i]
            if not c:
                return False
            r = c[0]
            del free[r]
            slot[nxt] = r
            t, k = nxt // 12, KORD[nxt % 12]
            t_ = ""
            sb = (60, 62, 54)[k // 4]
            if hbase.get(sb) != t:
                hbase[sb] = t
                t_ = f"s_add_u32 s{sb}, s59, {49152 * t + 4096 * (k // 4)}\n"
            if self.o.get("x_noh"):
                S.group(f"buffer_load_dword v{r}, off, s[{WS}:{WS + 3}], s{sb}", ("H", nxt))
            else:
                S.group(t_ + f"buffer_load_dwordx4 {v(r, 4)}, v{vL16}, s[{WS}:{WS + 3}], s{sb} offen offset:{1024 * (k % 4)} {self.o.get('hpol', 'sc1')}", ("H", nxt))
            nxt += 1
            return True

        def wread(c):
            return [f"ds_read_b128 {v(TMP + 4 * jj, 4)}, v7 offset:{(c - 8) * 5120 + 1024 * jj}" for jj in range(5)]
        setup = [f"s_lshl_b32 s48, s{sW}, 12\nv_add_u32 v3, s48, v5", f"s_lshl_b32 s48, s{sW}, 10\nv_add_u32 v13, s48, v5",
                 f"v_and_b32 v4, 15, v{vL}\nv_lshrrev_b32 v15, 4, v{vL}"]
        if layer == 1:
            setup += ["v_mul_u32_u24 v14, 1280, v4\nv_lshl_add_u32 v14, v15, 3, v14"]
        setup += ["v_lshlrev_b32 v4, 4, v4\nv_and_b32 v15, 1, v15", f"v_lshl_add_u32 v4, v15, 3, v4\nv_lshrrev_b32 v15, 5, v{vL}", "v_lshl_add_u32 v4, v15, 8, v4",
                  f"s_and_b32 s63, s{sM}, 7\ns_mul_i32 s48, s63, 10", f"s_lshl_b32 s49, s{sROT}, 2\ns_sub_u32 s48, s48, s49",
                  f"s_lshl_b32 s49, s{sW}, 1\ns_add_u32 s50, s48, s49", "s_add_u32 s49, s50, 80\ns_min_u32 s50, s50, s49",
                  "s_add_u32 s51, s48, 8\ns_add_u32 s49, s51, 80", "s_min_u32 s51, s51, s49\ns_lshl_b32 s50, s50, 8",
                  f"s_lshl_b32 s51, s51, 8\ns_lshr_b32 s48, s{sM}, 3", f"s_lshl_b32 s49, s{sG}, 2\ns_add_u32 s48, s48, s49",
                  f"s_mul_i32 s48, s48, 81920\ns_add_u32 s49, s48, {AB}", "s_add_u32 s50, s50, s49\ns_add_u32 s51, s51, s49"]
        if layer == 1:
            setup += ["s_mul_i32 s63, s63, 160\ns_add_u32 s48, s48, s63", f"s_lshl_b32 s49, s{sW}, 5\ns_add_u32 s52, s48, s49", "s_add_u32 s53, s48, 128"]
        else:
            setup += self.y_addr(14, 1)

        setup += [f"s_mul_i32 s48, s{sW}, 20480\ns_add_u32 s51, s51, s48", f"s_lshl_b32 s49, s{sW}, 10\ns_add_u32 s49, s49, {L_XD}",
                  f"v_add_u32 v15, s49, v{vL16}\ns_mul_i32 s49, s{sW}, 3072", "v_add_u32 v5, s49, v15"]
        if layer == 1:
            setup += ["s_add_u32 s53, s53, s48"]

        def xload(t, u, d):
            return f"s_add_u32 s55, s{50 + u}, {20480 * t}\nbuffer_load_dwordx2 {v(d, 2)}, v4, s[{WS}:{WS + 3}], s55 offen sc1"

        def pwrites(t, X):
            return [f"ds_write_b128 v3, {v(X + 4 * jj, 4)} offset:{16384 * (t & 1) + 1024 * jj}" for jj in range(4)] + \
                   [f"ds_write_b128 v15, {v(X + 16, 4)} offset:{4096 * t}"]

        def ureads(t, u, D):
            if u == 0:
                return [f"ds_read_b128 {v(D + 4 * s_, 4)}, v13 offset:{16384 * (t & 1) + 4096 * s_}" for s_ in range(4)]
            return [f"ds_read_b128 {v(D + 4 * s_, 4)}, v5 offset:{1024 * s_}" for s_ in range(4)]

        def ustore(t, u, r):
            t_ = f"s_add_u32 s49, s{((50, 51), (52, 53))[layer][u]}, {20480 * t}\n"
            if layer == 0:
                return t_ + f"buffer_store_dwordx2 {v(r, 2)}, v4, s[{WS}:{WS + 3}], s49 offen {self.sc}"
            return t_ + f"buffer_store_dwordx2 {v(r, 2)}, v14, s[{OUT}:{OUT + 3}], s49 offen"

        def unpack(d, x):
            return [f"v_lshlrev_b32 v{d}, 16, v{x}", f"v_and_b32 v{d + 1}, 0xffff0000, v{x}", f"v_lshlrev_b32 v{d + 2}, 16, v{x + 1}", f"v_and_b32 v{d + 3}, 0xffff0000, v{x + 1}"]
        for _ in range(3):
            hload(0)
        S.gap(0, True)
        S.valu(wread(8), "tr")
        S.valu(self.tail, "g1")
        if not self.tail:
            S.h["g1"] = self.hG1
            free.update({56: 2, 60: 2})
        S.valu(setup)
        for i in range(48):
            t, pos = divmod(i, 12)
            k = KORD[pos]
            X, D = ACC[t & 1], ACC[(t + 1) & 1]
            if i == 8:
                assert all(o[0] != "g1" for o in S.ops)
            if i == self.o.get("nF", 5):
                a.wait(S.h["g1"])
                self.flag(PL)
            if i == 11:
                a("s_barrier")
            if t > 0 and pos == 0:
                assert not S.ops or all(o[0] == "tr" for o in S.ops), (i, S.ops)
                S.group(xload(t - 1, 0, 108), "x")
                S.valu(pwrites(t - 1, D)[:1 if self.o.get("x_nowr") else 5], "wr")
            if t > 0 and pos == 3:
                assert all(o[0] == "tr" for o in S.ops), (i, S.ops)
                a.wait(S.h["wr"])
                a("s_barrier")
                S.valu(ureads(t - 1, 0, D), "rd")
            if t > 0 and pos == 5 and not self.o.get("x_nored"):
                S.ops.append(("after", "rd", 6))
                S.valu([f"v_add_f32 v{D + r}, v{D + r}, v{D + 4 + r}" for r in range(4)] + [f"v_add_f32 v{D + 8 + r}, v{D + 8 + r}, v{D + 12 + r}" for r in range(4)])
                S.ops.append(("after", "x", 0))
                S.valu(unpack(D + 4, 108) + [f"v_add_f32 v{D + r}, v{D + r}, v{D + 8 + r}" for r in range(4)] + [f"v_add_f32 v{D + r}, v{D + r}, v{D + 4 + r}" for r in range(4)])
                S.valu([f"v_cvt_pk_bf16_f32 v{D + 4}, v{D}, v{D + 1}", f"v_cvt_pk_bf16_f32 v{D + 5}, v{D + 2}, v{D + 3}", ustore(t - 1, 0, D + 4)])
            if i == nL - self.o.get("dL", 6):
                S.group(lpoll(8), "lp", True)
            if i == 30 and layer == 0:
                for o in self.r_ydma(14):
                    S.group(o, "y")
            if i == 42:
                S.group(xload(3, 0, 110), "x3")
            if i == 45:
                S.group(xload(0, 1, 108), "x3")
                if layer == 1 and self.o.get("wb2", 0):
                    S.gap(0, True)
                    self.writeback()
            if i == nL:
                S.finish()
                if not self.o.get("x_nochk"):
                    self.check4(S.h["lp"], 8, lpoll(8))
            if hload(i) and i >= 7 and nxt - i < self.o.get("nwin", 12):
                hload(i)
            a.wait(hH[i] if i < NPF else S.h["H", i])
            if pos == 0:
                self.stamp(f"g2s{i}_{layer}")
            if k >= 8:
                assert all(o[0] != "tr" for o in S.ops), i
                a.wait(S.h["tr"])
            for jj in range(5):
                acc = v(X + 4 * jj, 4)
                A = WDreg(k, jj) if k < 8 else v(TMP + 4 * jj, 4)
                a(f"v_mfma_f32_16x16x32_bf16 {acc}, {A}, {v(slot[i], 4)}, {'0' if pos == 0 else acc}")
                b = 8
                if jj == 0 and i + 2 < NPF:
                    a.wait(self.hPF[i + 2])
                    hH[i + 2] = a(f"ds_read_b128 {v(slot[i + 2], 4)}, v8 offset:{L_PF + 1024 * self.pfpos[i + 2]}")
                    b = 0
                if jj == 4:
                    b = 0 if KORD[(pos + 1) % 12] >= 8 else 4
                    if k >= 8 and i + 1 < 48:
                        S.ops[0:0] = [("tr", o) for o in wread(8 + (k - 8 + 1) % 4)]
                S.gap(b + (4 if i < 8 and self.tail else 0))
            if i >= NPF - 3:
                free[slot[i]] = i + 1
        assert not S.busy(), S.ops
        if layer == 0:
            self.hy2 = S.h["y"]
        self.stamp(f"g2mf{layer}")
        for o in pwrites(3, ACC[1]):
            a(o)
        a.wait(S.h["x3"])
        for o in unpack(104, 108) + unpack(32, 110):
            a(o)
        a("s_waitcnt lgkmcnt(0)\ns_barrier")
        hr = [[a(o) for o in ureads(3, u, (16, 88)[u])][-1] for u in range(2)]
        for u, (D, xf) in enumerate(((16, 32), (88, 104))):
            a.wait(hr[u])
            for h2 in (0, 2):
                a(f"v_pk_add_f32 {v(D + h2, 2)}, {v(D + h2, 2)}, {v(D + 4 + h2, 2)}\nv_pk_add_f32 {v(D + 8 + h2, 2)}, {v(D + 8 + h2, 2)}, {v(D + 12 + h2, 2)}")
            for h2 in (0, 2):
                a(f"v_pk_add_f32 {v(D + h2, 2)}, {v(D + h2, 2)}, {v(xf + h2, 2)}")
            for h2 in (0, 2):
                a(f"v_pk_add_f32 {v(D + h2, 2)}, {v(D + h2, 2)}, {v(D + 8 + h2, 2)}")
            a(f"v_cvt_pk_bf16_f32 v{D + 4}, v{D}, v{D + 1}\nv_cvt_pk_bf16_f32 v{D + 5}, v{D + 2}, v{D + 3}")
            hF = a(ustore(3 if u == 0 else 0, u, D + 4))
        if layer == 0:
            self.r_addr(1)
            a.wait(hF)
            self.flag(PH_G2A)
        self.stamp(f"g2done{layer}")

    def body(self, slow):
        a = self.a
        self.slow = slow
        self.sc = "sc1" if slow else ""
        tagn = "s" if slow else "f"
        done = f"L_fin_{tagn}"

        def stop(name):
            if self.stop == name:
                a(f"s_branch {done}")
        a.mute = slow
        self.p0_store()
        a(f"s_cmp_ge_u32 s{sM}, 20\ns_cbranch_scc1 L_noconv_{tagn}")
        self.conv()
        a(f"s_branch L_join_{tagn}")
        a.mute = slow
        a(f"L_noconv_{tagn}:")
        self.nonconv()
        a(f"L_join_{tagn}:")
        stop("conv")
        for t_ in self.y_addr(5, 0):
            a(t_)
        self.r_addr(0)
        self.wds_setup()
        a(f"v_and_b32 v91, 1, v{vL}\nv_lshlrev_b32 v91, 15, v91\nbuffer_load_dword v91, v91, s[{WS}:{WS + 3}], s59 offen sc1")
        wq = self.wq2
        self.mix(self.r_pre, wq, 5)
        for g_ in wq:
            a(g_)
        self.colsum(range(0, 11))
        self.stamp("wissued")
        self.y_wait()
        self.stamp("yseen")
        for t_ in self.r_ydma(5):
            hy = a(t_)
        self.wq = self.wds_loads()
        npre = self.o.get("wpre", 4)
        for _ in range(npre):
            a(self.wq.pop(0))
        a.wait(hy)
        self.stamp("yin")
        self.r_yread()
        self.r_main(0, self.w1_tr_batch(11, 9))
        for _ in range(self.o.get("wpre2", 14)):
            a(self.wq.pop(0))
        self.stamp("r1done")
        stop("r1")
        self.g1(0)
        stop("g1")
        self.g2(0)
        stop("g2")
        self.r2()
        self.stamp("r2done")
        stop("r2")
        self.g1(1)
        self.g2(1)
        a(f"{done}:")
        if self.o.get("pad"):
            L = a.label("pad")
            a(f"s_waitcnt lgkmcnt(0)\ns_add_u32 s52, s{sPROF}, {self.o['pad']}\n{L}:\ns_memrealtime s[50:51]")
            for i in range(self.o.get("padmf", 0)):
                a(f"v_mfma_f32_16x16x32_bf16 {v(56 + 4 * (i % 8), 4)}, {a_(96 + 4 * (i % 40), 4)}, {v(112 + 4 * (i % 36), 4)}, {v(56 + 4 * (i % 8), 4)}")
            a(f"s_waitcnt lgkmcnt(0)\ns_sub_u32 s50, s50, s52\ns_cmp_lt_i32 s50, 0\ns_cbranch_scc1 {L}")
        elif self.prof and self.o.get("dbg"):
            a("s_load_dwordx2 s[48:49], s[0:1], 88\ns_waitcnt lgkmcnt(0)")
            a("s_mov_b32 s50, 256\ns_mov_b32 s51, 0x20000\ns_mov_b64 exec, 1")
            a(f"s_not_b32 s52, s{sPROF}\nv_mov_b32 v3, s52\nbuffer_atomic_umax v3, off, s[48:51], 0")
            for i in range(1, 16):
                a(f"v_mov_b32 v{3 + i}, s{sPROF + 2 * i}\nbuffer_atomic_umax v{3 + i}, off, s[48:51], 0 offset:{4 * i}")
        elif self.prof:
            a("s_waitcnt lgkmcnt(0)")
            a(f"s_lshl_b32 s48, s2, 2\ns_add_u32 s48, s48, s{sW}\ns_lshl_b32 s48, s48, 7\ns_add_u32 s48, s48, {WS_PROF}")
            a("s_mov_b64 exec, 1")
            for i in range(16):
                a(f"v_mov_b32 v3, s{sPROF + 2 * i}\nbuffer_store_dword v3, off, s[{WS}:{WS + 3}], s48 offset:{4 * i}")
            a(f"v_mov_b32 v3, {1 if slow else 0}\nbuffer_store_dword v3, off, s[{WS}:{WS + 3}], s48 offset:64")
        a("s_endpgm")

    def build(self):
        a = self.a
        self.names = []
        if self.prof:
            for i in range(16):
                a(f"s_mov_b32 s{sPROF + 2 * i}, 0")
        self.prologue()
        self.body(False)
        self.body(True)
        if self.o.get("safe"):
            a("L_bail:")
            a(f"s_mov_b64 exec, 1\nv_mov_b32 v3, 0xdead\nbuffer_store_dword v3, off, s[{WS}:{WS + 3}], 0 offset:128 sc1")
        a("L_exit:")
        body = a.text()
        head = open("interleave_layers__ssm_conv_h3__glu_gated_reglu__prompt.s.ref").read().split("; Override")[0]
        return (head + "; @launch grid=(256,1,1) block=(256,1,1) lds=163840\n"
                '.amdgcn_target "amdgcn-amd-amdhsa--gfx950"\n.text\n'
                f".globl {NAME}\n.p2align 8\n.type {NAME},@function\n{NAME}:\n" + body + "  s_endpgm\n"
                '.section .rodata,"a"\n.p2align 6\n'
                f".amdhsa_kernel {NAME}\n  .amdhsa_next_free_vgpr 512\n  .amdhsa_next_free_sgpr 102\n  .amdhsa_accum_offset 256\n"
                "  .amdhsa_group_segment_fixed_size 0\n  .amdhsa_kernarg_size 104\n  .amdhsa_user_sgpr_count 2\n"
                "  .amdhsa_user_sgpr_kernarg_segment_ptr 1\n  .amdhsa_system_sgpr_workgroup_id_x 1\n"
                "  .amdhsa_float_denorm_mode_32 3\n.end_amdhsa_kernel\n")


if __name__ == "__main__":
    g = Gen()
    t = g.build()
    out = sys.argv[1] if len(sys.argv) > 1 else "interleave_layers__ssm_conv_h3__glu_gated_reglu__prompt.s"
    open(out, "w").write(t)
    print("written", out, len(t), "bytes; auto nops", g.a.auto_nops)
```

```python
import sys, gen
args = sys.argv[1:]
for n, o in zip(args[::2], args[1::2]):
    import importlib
    oo = eval(o); g = gen.Gen(prof=oo.pop('prof', False), opts=oo)
    t = g.build()
    open(f"var/{n}.s", "w").write(t)
    print(n, len(t), g.names)
```
